```python
import torch

def _softmax(x, axis=-1):
    return torch.softmax(x, dim=axis)
def _gelu(x):
    return torch.nn.functional.gelu(x, approximate="tanh")
def _silu(x):
    return torch.nn.functional.silu(x)
def _sigmoid(x):
    return torch.sigmoid(x)
def _layernorm(x, axis=-1, eps=1e-5):
    m = x.mean(dim=axis, keepdim=True)
    v = x.var(dim=axis, keepdim=True, unbiased=False)
    return (x - m) / torch.sqrt(v + eps)
def _scatter_add(tgt, idx, src, axis=0):
    return tgt.clone().index_add_(axis, idx, src)
def _segment_sum(src, seg, n):
    out = torch.zeros((n,) + src.shape[1:], dtype=src.dtype)
    return out.index_add_(0, seg, src)
def _pad(x, pw):
    flat = tuple(v for pair in reversed(pw) for v in pair)
    return torch.nn.functional.pad(x, flat)

kernel_name = 'standalone__modern_conv_block_convnext__vision'

def setup_inputs():

    _w = (lambda a: (lambda t: t.to(torch.bfloat16) if t.is_floating_point() else t)(torch.as_tensor(a)))
    H = W = 224
    C = 96
    K = 5
    return {
        "x": _w((lambda *s: torch.randn(*s, dtype=torch.bfloat16) * 0.05)(1, H, W, C)),
        "dw": _w((lambda *s: torch.randn(*s, dtype=torch.bfloat16) * 0.05)(K, K, C)),
        "w1": _w((lambda *s: torch.randn(*s, dtype=torch.bfloat16) * 0.05)(C, 4 * C)),
        "b1": _w((lambda *s: torch.randn(*s, dtype=torch.bfloat16) * 0.2)(4 * C)),
        "w2": _w((lambda *s: torch.randn(*s, dtype=torch.bfloat16) * 0.05)(4 * C, C)),
        "b2": _w((lambda *s: torch.randn(*s, dtype=torch.bfloat16) * 0.4)(C)),
        "gamma": _w((lambda *s: torch.randn(*s, dtype=torch.bfloat16) * 0.05)(C)),
    }

def reference(x, dw, w1, b1, w2, b2, gamma):
    B, H, W, C = x.shape
    K = dw.shape[0]
    pad = K // 2
    xp = _pad(x, ((0,0),(pad,pad),(pad,pad),(0,0)))
    out = torch.zeros_like(x)
    for i in range(K):
        for j in range(K):
            out = out + xp[:, i:i+H, j:j+W, :] * dw[i, j][None, None, None, :]
    h = _layernorm(out, axis=-1)
    h = torch.einsum('bhwc,ce->bhwe', h, w1) + b1
    h = _gelu(h)
    h = torch.einsum('bhwe,ec->bhwc', h, w2) + b2
    return x + gamma[None, None, None, :] * h
```

```python
import re

TRANS = ("v_exp_f32", "v_rcp_f32", "v_rsq_f32", "v_log_f32", "v_sqrt_f32")


def regs(tok):
    tok = tok.strip().lstrip("-")
    if tok.startswith("abs(") or tok.startswith("|"):
        tok = tok.replace("abs(", "").replace(")", "").replace("|", "")
    m = re.fullmatch(r"([vsa])\[(\d+):(\d+)\]", tok)
    if m:
        return [(m.group(1), i) for i in range(int(m.group(2)), int(m.group(3)) + 1)]
    m = re.fullmatch(r"([vsa])(\d+)", tok)
    if m:
        return [(m.group(1), int(m.group(2)))]
    if tok == "vcc":
        return [("s", "vcc")]
    if tok == "m0":
        return [("s", "m0")]
    if tok == "exec":
        return [("s", "exec")]
    return []


class Ins:
    def __init__(self, text):
        self.text = text
        t = text.split(";")[0].strip()
        parts = t.split(None, 1)
        self.op = parts[0]
        rest = parts[1] if len(parts) > 1 else ""
        ops = [x.strip() for x in rest.split(",")]
        if ops:
            ops[-1] = ops[-1].split(" ")[0] if not ops[-1].startswith("hwreg") else ops[-1]
        self.mods = rest
        op = self.op
        self.kind = "other"
        self.w, self.r = [], []
        self.ab, self.c = [], []
        self.states = 1
        self.passes = 0
        R = [regs(o) for o in ops]
        if op.startswith("v_mfma") or op.startswith("v_smfmac"):
            self.kind = "mfma"
            self.passes = 8 if "32x32" in op else 4
            self.w = R[0]
            if op.startswith("v_smfmac"):
                self.ab = R[1] + R[2] + R[3]
                self.c = R[0]
            else:
                self.ab = R[1] + R[2]
                self.c = R[3]
            self.r = self.ab + self.c
        elif op.startswith("v_"):
            self.kind = "valu"
            base = op.replace("_e32", "").replace("_e64", "")
            self.trans = base in TRANS
            if base.startswith("v_permlane"):
                self.w = R[0] + R[1]
                self.r = R[0] + R[1]
            else:
                self.w = R[0]
                self.r = sum(R[1:], [])
                if base in ("v_fmac_f32",):
                    self.r += R[0]
        elif op.startswith("ds_read"):
            self.kind = "lds"
            self.w = R[0]
            self.r = R[1]
        elif op.startswith("ds_"):
            self.kind = "lds"
            self.r = sum(R, [])
        elif op.startswith("buffer_load") or op.startswith("global_load"):
            self.kind = "vmem"
            if re.search(r"\blds\b", rest):
                self.r = sum(R, []) + [("s", "m0")]
                self.dma = True
            else:
                self.w = R[0]
                self.r = sum(R[1:], [])
        elif op.startswith("buffer_store") or op.startswith("global_store"):
            self.kind = "vmem"
            self.r = sum(R, [])
            self.store = R[0] if op.startswith("buffer") else R[1]
        elif op == "s_nop":
            self.states = int(ops[0]) + 1
        elif op == "s_waitcnt":
            self.kind = "wait"
        elif op.startswith("s_load") or op.startswith("s_memtime") or op.startswith("s_memrealtime"):
            self.kind = "smem"
            self.w = R[0]
            self.r = sum(R[1:], [])
        elif op.startswith("s_cmp") or op.startswith("s_bitcmp") or op.startswith("s_cbranch") or op in (
                "s_branch", "s_barrier", "s_setprio", "s_endpgm", "s_sleep"):
            self.kind = "salu"
            self.r = sum(R, [])
        elif op.startswith("s_"):
            self.kind = "salu"
            self.w = R[0]
            self.r = sum(R[1:], [])


def is_ins(l):
    l = l.strip()
    return bool(l) and not l.startswith((";", ".")) and not l.endswith(":")


def check(lines, name=""):
    idx = [n for n, l in enumerate(lines) if is_ins(l)]
    ins = [Ins(lines[n]) for n in idx]
    errs = []
    short = []
    pos = []
    p = 0
    for i in ins:
        pos.append(p)
        p += i.states
    lgkm, vm = [], []
    for j, b in enumerate(ins):
        def dist(k):
            return pos[j] - pos[k] - ins[k].states

        def err(k, need, why):
            short.append((idx[j], need - dist(k), f"{name}: {why}: need {need} have {dist(k)}: {ins[k].text} -> {b.text}"))
        rb, wb = set(b.r), set(b.w)
        for k in range(j - 1, max(-1, j - 24), -1):
            a = ins[k]
            d = dist(k)
            if d >= 20:
                break
            wa = set(a.w)
            if a.kind == "valu":
                vw = {x for x in wa if x[0] != "s"}
                sw = {x for x in wa if x[0] == "s"}
                if b.kind == "mfma" and vw & rb and d < 2:
                    err(k, 2, "valu->mfma")
                if b.kind == "valu" and a.trans and not b.trans and vw & rb and d < 1:
                    err(k, 1, "trans->valu")
                if b.op.startswith("v_permlane") and vw & rb and d < 2:
                    err(k, 2, "valu->permlane")
                if b.op.startswith(("v_readfirstlane", "v_readlane")) and vw & rb and d < 1:
                    err(k, 1, "valu->readlane")
                if "dpp" in b.op and vw & rb and d < 2:
                    err(k, 2, "valu->dpp")
                if b.kind == "valu" and sw & rb and d < 2:
                    err(k, 2, "valu sgpr->valu")
                if b.kind == "vmem" and sw & rb and d < 5:
                    err(k, 5, "valu sgpr->vmem")
                if b.kind == "salu" and sw & rb and d < 1:
                    err(k, 1, "valu sgpr->salu")
            if a.kind == "mfma":
                n = {8: 12, 4: 8}[a.passes]
                if b.kind in ("valu", "lds", "vmem") and wa & (rb | wb) and d < n:
                    err(k, n, "mfma D->use")
                if b.kind == "mfma":
                    if wa & set(b.ab) and d < n:
                        err(k, n, "mfma D->AB")
                    if wa & set(b.c) and not (a.w == b.c and a.passes == b.passes) and d < n - 2:
                        err(k, n - 2, "mfma D->C partial")
                    if wa & wb and not (wa & set(b.c)) and d < n - 2:
                        err(k, n - 2, "mfma D->D waw")
                m = {8: 7, 4: 3}[a.passes]
                if b.kind == "valu" and set(a.c) & wb and d < m:
                    err(k, m, "mfma C war")
            if a.kind == "salu" and ("s", "m0") in wa and getattr(b, "dma", False) and d < 1:
                err(k, 1, "m0->dma")
            if a.kind == "vmem" and getattr(a, "store", None) and len(a.store) >= 3 and set(a.store) & wb and d < 2:
                err(k, 2, "store data war")
        touched = rb | wb
        for q, nm in ((lgkm, "lgkm"), (vm, "vm")):
            for k in q:
                if set(ins[k].w) & touched:
                    errs.append(f"{name}: pending {nm} result touched\n    {ins[k].text}\n    {b.text}")
        if b.kind == "wait":
            m = re.search(r"lgkmcnt\((\d+)\)", b.text)
            if m:
                n = int(m.group(1))
                if n > 0 and any(ins[k].kind == "smem" for k in lgkm):
                    errs.append(f"{name}: counted lgkmcnt with smem outstanding: {b.text}")
                del lgkm[:max(0, len(lgkm) - n)]
            m = re.search(r"vmcnt\((\d+)\)", b.text)
            if m:
                n = int(m.group(1))
                del vm[:max(0, len(vm) - n)]
        elif b.kind in ("lds", "smem"):
            lgkm.append(j)
        elif b.kind == "vmem":
            vm.append(j)
    return errs, short


def fix(segs, traces, verbose=False):
    added = 0
    while True:
        changed = False
        for tname, tr in traces.items():
            lines, back = [], []
            for sname in tr:
                for n, l in enumerate(segs[sname]):
                    lines.append(l)
                    back.append((sname, n))
            errs, short = check(lines, tname)
            if errs:
                raise RuntimeError("\n".join(errs[:20]))
            if short:
                j = short[0][0]
                need = max(d for jj, d, _ in short if jj == j)
                if verbose:
                    print("nop", need, short[0][2])
                sname, n = back[j]
                segs[sname].insert(n, f"s_nop {need - 1}")
                added += 1
                changed = True
                break
        if not changed:
            return added
```

```python
import math
import struct
import sys

from hazard import fix

KN = "standalone__modern_conv_block_convnext__vision"
OPT = dict(xnt="nt", snt="", stamps=0, pf=1)
for a in sys.argv[2:]:
    k, v = a.split("=")
    OPT[k] = int(v) if v.lstrip("-").isdigit() else v


def f32(x):
    return "0x%08x" % struct.unpack("<I", struct.pack("<f", x))[0]


LOG2E = 1.4426950408889634
K1 = 2.0 * math.sqrt(2.0 / math.pi)
BETA = -((LOG2E * K1 * 0.044715) ** (1.0 / 3.0))
CGELU = LOG2E * K1 / -BETA

PAIR = 24576
XIMG = 3 * PAIR
DWT = XIMG + 76800
TAB = DWT + 8192
LDS_BYTES = TAB + 2816
B2OFF, GAMOFF = 448 * 4, 576 * 4
XB = 224 * 224 * 192
ROWB = 224 * 192
BIG = 0x20000000

LANE, XV, WV, IDX, AW1, AW2, ABI, XRA, OW, ORD, GO, AGAM, T0, T1 = 0, 1, 2, 3, 4, 5, 6, 7, 8, 9, 10, 13, 14, 15
CACC, AF, BB, CP = 16, 28, 220, 252
ACC2, ACC1, BOP, W1F, W2F, GR, TR, BIAS, XRES, TMP = 16, 64, 96, 120, 144, 168, 176, 192, 208, 232
SX, SDW, SW, ST, SO = 24, 28, 32, 36, 40
P_W1, P_B1, P_W2, P_B2, P_GA = 4, 6, 8, 10, 12
WAVE, KQ, TY, TX, SROW, SM0, SA, SB, SC, OBASE, WSI, WSP, WG0, WM0, ITER, SCALE = range(48, 64)
STAMP = 64
nstamp = [0]


def stamp(name):
    if not OPT["stamps"]:
        return []
    n = nstamp[0]
    nstamp[0] += 1
    STAMPS.append(name)
    return [f"s_memtime s[{STAMP + 2 * n}:{STAMP + 2 * n + 1}]"]


STAMPS = []


def vr(b, n):
    return f"v[{b}:{b + n - 1}]"


def srd(base, size):
    return [f"s_mov_b32 s{base + 2}, {size}", f"s_mov_b32 s{base + 3}, 0x20000"]


def setup():
    o = []
    o += stamp("start")
    o += [f"s_load_dwordx2 s[{SX}:{SX + 1}], s[0:1], 0",
          f"s_load_dwordx2 s[{SDW}:{SDW + 1}], s[0:1], 8",
          f"s_load_dwordx8 s[4:11], s[0:1], 16",
          f"s_load_dwordx2 s[12:13], s[0:1], 48",
          f"s_load_dwordx2 s[{SO}:{SO + 1}], s[0:1], 56"]
    if OPT["stamps"]:
        o += ["s_load_dwordx2 s[20:21], s[0:1], 72"]
    o += [f"v_readfirstlane_b32 s{WAVE}, v0",
          f"s_and_b32 s{SA}, s2, 7", f"s_lshr_b32 s{SB}, s2, 3",
          f"s_cmp_ge_u32 s{SB}, 25", "s_cbranch_scc1 L_end",
          f"s_mul_i32 s{SA}, s{SA}, 25", f"s_add_u32 s{SA}, s{SA}, s{SB}",
          f"s_cmp_ge_u32 s{SA}, 196", "s_cbranch_scc1 L_end"]
    if OPT["pf"]:
        o += ["s_getpc_b64 s[14:15]", "L_pc:",
              f"v_lshlrev_b32 v{T0}, 4, v0",
              f"v_min_u32 v{T1}, L_codeend-L_pc-16, v{T0}",
              f"global_load_dwordx4 {vr(BB + 4, 4)}, v{T1}, s[14:15]",
              f"v_add_u32 v{T0}, 0x2000, v{T0}",
              f"v_min_u32 v{T1}, L_codeend-L_pc-16, v{T0}",
              f"global_load_dwordx4 {vr(BB + 8, 4)}, v{T1}, s[14:15]"]
    o += [f"v_and_b32 v{LANE}, 63, v0",
          f"s_lshr_b32 s{WAVE}, s{WAVE}, 6",
          f"s_mul_hi_u32 s{TY}, s{SA}, 0x12492493",
          f"s_mul_i32 s{SB}, s{TY}, 14", f"s_sub_u32 s{TX}, s{SA}, s{SB}",
          f"s_and_b32 s{KQ}, s{WAVE}, 3"]
    a, b, c = BB + 14, BB + 15, BB + 16
    o += [f"v_mul_u32_u24 v{a}, 43, v{LANE}", f"v_lshrrev_b32 v{a}, 9, v{a}",
          f"v_mul_u32_u24 v{b}, 12, v{a}", f"v_sub_u32 v{b}, v{LANE}, v{b}",
          f"s_mul_i32 s{SB}, s{KQ}, 5", f"v_add_u32 v{a}, s{SB}, v{a}",
          f"v_bfe_u32 v{c}, v{a}, 2, 2", f"v_xor_b32 v{b}, v{b}, v{c}",
          f"s_lshl_b32 s{SB}, s{TX}, 4", f"s_sub_u32 s{SB}, s{SB}, 2", f"v_add_u32 v{a}, s{SB}, v{a}",
          f"v_min_u32 v{a}, 0xe0, v{a}", f"v_add_u32 v{c}, 32, v{a}", f"v_lshrrev_b32 v{c}, 8, v{c}",
          f"v_mul_u32_u24 v{a}, 0xc0, v{a}", f"v_lshl_add_u32 v{a}, v{b}, 4, v{a}",
          f"v_lshl_add_u32 v{XV}, v{c}, 29, v{a}",
          f"s_lshr_b32 s{SB}, s{WAVE}, 2", f"s_lshl_b32 s{SC}, s{TY}, 4", f"s_add_u32 s{SC}, s{SC}, s{SB}",
          f"s_sub_u32 s{SC}, s{SC}, 2", f"s_mul_i32 s{SROW}, s{SC}, {ROWB}",
          f"s_cmp_lt_i32 s{SC}, 0", f"s_cselect_b32 s{SA}, {BIG}, s{SROW}",
          f"s_mul_i32 s{SB}, s{SB}, 3840", f"s_mul_i32 s{SC}, s{KQ}, 960", f"s_add_u32 s{SM0}, s{SB}, s{SC}",
          f"s_add_u32 s{SM0}, s{SM0}, {XIMG}"]
    o += [f"s_lshl_b32 s{SB}, s{WAVE}, 10", f"v_lshlrev_b32 v{WV}, 4, v{LANE}",
          f"s_sub_u32 s{SC}, s{SB}, 960", f"v_add_u32 v{T0}, s{SC}, v{WV}",
          f"s_add_u32 m0, s{SB}, {DWT}"]
    o += srd(SX, XB) + srd(SDW, 4800) + srd(SO, XB) + srd(SW, 73728) + [f"s_mov_b32 s{ST + 3}, 0x20000"]
    o += [f"s_cmp_lt_u32 s{WAVE}, 6", f"s_movk_i32 s{ST + 2}, 192", f"s_cmov_b32 s{ST + 2}, 768",
          f"s_cselect_b32 s{SC}, s{WAVE}, 0", f"s_lshl_b32 s{SC}, s{SC}, 7",
          f"v_lshl_add_u32 v{T1}, v{LANE}, 1, s{SC}",
          "s_waitcnt lgkmcnt(0)"]
    o += stamp("karg")
    o += [f"buffer_load_dwordx4 v{T0}, s[{SDW}:{SDW + 3}], 0 offen lds",
          f"s_cmp_eq_u32 s{WAVE}, 6", f"s_cselect_b64 s[{ST}:{ST + 1}], s[{P_B2}:{P_B2 + 1}], s[{P_B1}:{P_B1 + 1}]",
          f"s_cmp_eq_u32 s{WAVE}, 7", f"s_cselect_b64 s[{ST}:{ST + 1}], s[{P_GA}:{P_GA + 1}], s[{ST}:{ST + 1}]",
          f"s_mov_b32 s{SCALE}, {f32(BETA)}", f"s_cmov_b32 s{SCALE}, {f32(1.0 / BETA)}",
          f"buffer_load_ushort v{BB + 12}, v{T1}, s[{ST}:{ST + 3}], 0 offen",
          f"buffer_load_ushort v{BB + 13}, v{T1}, s[{ST}:{ST + 3}], 0 offen offset:128",
          "s_bfm_b64 exec, 60, 0"]
    for i in range(10):
        o += [f"s_add_u32 m0, s{SM0}, {7680 * i}"]
        if i:
            o += [f"s_add_u32 s{SA}, s{SROW}, {2 * ROWB * i}"]
        else:
            o += ["s_nop 0"]
        o += [f"buffer_load_dwordx4 v{XV}, s[{SX}:{SX + 3}], s{SA} offen {OPT['xnt']} lds"]
    o += ["s_mov_b64 exec, -1"]
    o += [f"s_cmp_lt_u32 s{WAVE}, 4",
          f"s_cselect_b64 s[{SW}:{SW + 1}], s[{P_W1}:{P_W1 + 1}], s[{P_W2}:{P_W2 + 1}]",
          f"s_movk_i32 s{WSI}, 1024", f"s_cmov_b32 s{WSI}, 6144", f"s_movk_i32 s{WSP}, 12288", f"s_cmov_b32 s{WSP}, 128",
          f"s_cselect_b32 s{WM0}, 0, 12288",
          "s_cbranch_scc0 L_w2addr",
          f"v_bfe_u32 v{a}, v{LANE}, 2, 3", f"v_mul_u32_u24 v{a}, 0x300, v{a}",
          f"v_lshrrev_b32 v{b}, 5, v{LANE}", f"v_lshl_add_u32 v{a}, v{b}, 6, v{a}",
          f"v_and_b32 v{b}, 3, v{LANE}", f"v_lshl_add_u32 v{WV}, v{b}, 4, v{a}",
          "L_w2addr:",
          f"s_mul_i32 s{SB}, s{KQ}, 3", f"s_mul_i32 s{WG0}, s{SB}, s{WSI}",
          f"s_lshl_b32 s{SB}, s{SB}, 10", f"s_add_u32 s{WM0}, s{WM0}, s{SB}"]
    o += wdma(3)
    o += stamp("issued")
    return o


def wdma(npairs):
    o = []
    for p in range(npairs):
        for i in range(3):
            o += [f"s_add_u32 m0, s{WM0}, {1024 * i}"]
            o += [f"s_mov_b32 s{SA}, s{WG0}"] if i == 0 else [f"s_add_u32 s{SA}, s{SA}, s{WSI}"]
            o += [f"buffer_load_dwordx4 v{WV}, s[{SW}:{SW + 3}], s{SA} offen lds"]
        o += [f"s_add_u32 s{WM0}, s{WM0}, {PAIR}", f"s_add_u32 s{WG0}, s{WG0}, s{WSP}"]
    return o


def addresses():
    o = []
    n, g, hf, s, rho, c, t, u, w = (BB + 14 + i for i in range(9))
    o += [f"v_and_b32 v{n}, 15, v{LANE}", f"v_lshrrev_b32 v{g}, 4, v{LANE}", f"v_lshrrev_b32 v{hf}, 5, v{LANE}",
          f"v_and_b32 v{s}, 1, v{g}", f"v_bfe_u32 v{rho}, v{LANE}, 2, 2", f"v_and_b32 v{c}, 3, v{LANE}"]
    o += [f"s_mov_b32 s{SA}, 0x5555", f"v_mul_u32_u24 v{IDX}, s{SA}, v{c}"]
    o += [f"v_and_b32 v{t}, 2, v{c}", f"v_cmp_eq_u32 vcc, v{t}, v{rho}",
          f"v_and_b32 v{u}, 1, v{c}", f"v_mul_u32_u24 v{u}, 960, v{u}", f"v_lshlrev_b32 v{t}, 2, v{t}",
          f"v_sub_u32 v{t}, v{t}, v{u}", f"v_add_u32 v{t}, {DWT + 960}, v{t}",
          f"v_mov_b32 v{u}, {DWT + 30 * 192}", f"v_cndmask_b32 v{t}, v{u}, v{t}, vcc",
          f"v_mov_b32 v{u}, 0xc0", f"v_cndmask_b32 v{u}, 0, v{u}, vcc",
          f"v_lshlrev_b32 v{w}, 3, v{g}"]
    T0TAB = [[0, 1, 10, 11], [20, 21, 2, 3], [12, 13, 22, 23], [4, 14, 24, 30]]
    for q in range(4):
        cst = sum(v << (8 * i) for i, v in enumerate(T0TAB[q]))
        o += [f"s_mov_b32 s{SA}, {cst}", f"v_bfe_u32 v{BB + q}, s{SA}, v{w}, 8",
              f"v_mad_u32_u24 v{BB + q}, v{BB + q}, v{u}, v{t}"]

    def xaddr(dst, col, row, extra=None):
        r = [f"v_bfe_u32 v{t}, v{col}, 2, 2"]
        if extra is not None:
            r += [f"v_xor_b32 v{t}, v{t}, v{extra}"]
        r += [f"v_mul_u32_u24 v{u}, 0xc0, v{col}", f"v_lshl_add_u32 v{t}, v{t}, 4, v{u}",
              f"v_mul_u32_u24 v{u}, 0xf00, v{row}", f"v_add3_u32 v{dst}, v{t}, v{u}, s{SB}"]
        return r
    o += [f"s_mul_i32 s{SB}, s{WAVE}, 7680", f"s_add_u32 s{SB}, s{SB}, {XIMG}"]
    o += [f"v_add_u32 v{w}, v{n}, v{hf}"] + xaddr(CP, w, s)
    o += [f"v_add_u32 v{w}, 2, v{w}"] + xaddr(CP + 1, w, s)
    o += [f"v_add_u32 v{w}, 4, v{n}"] + xaddr(CP + 2, w, g)
    o += [f"v_mul_u32_u24 v{u}, 7680, v{hf}", f"v_sub_u32 v{u}, v{CP + 2}, v{u}", f"v_add_u32 v{CP + 3}, 15360, v{u}"]
    o += [f"s_add_u32 s{SB}, s{SB}, 7680", f"v_add_u32 v{w}, 2, v{n}"] + xaddr(XRA, w, s, hf)
    o += [f"v_lshl_add_u32 v{t}, v{hf}, 2, v{rho}", f"v_lshlrev_b32 v{u}, 5, v{s}",
          f"v_lshl_add_u32 v{w}, v{c}, 3, v{u}", f"v_lshl_add_u32 v{AW1}, v{t}, 6, v{w}",
          f"v_mul_u32_u24 v{t}, 0xc0, v{t}", f"v_and_b32 v{w}, 1, v{c}", f"v_lshl_add_u32 v{u}, v{w}, 4, v{u}",
          f"v_lshrrev_b32 v{w}, 1, v{c}", f"v_lshl_add_u32 v{u}, v{w}, 3, v{u}", f"v_add_u32 v{AW2}, v{t}, v{u}",
          f"v_lshlrev_b32 v{t}, 4, v{hf}", f"v_add_u32 v{ABI}, {TAB}, v{t}",
          f"v_add_u32 v{AGAM}, v{ABI}, v{t}"]
    o += [f"s_mul_i32 s{SB}, s{WAVE}, 6144",
          f"v_bfe_u32 v{t}, v{n}, 1, 2", f"v_xor_b32 v{t}, v{t}, v{hf}", f"v_and_b32 v{u}, 31, v{LANE}",
          f"v_mul_u32_u24 v{u}, 0xc0, v{u}", f"v_lshl_add_u32 v{t}, v{t}, 4, v{u}", f"v_add_u32 v{OW}, s{SB}, v{t}",
          f"v_lshl_add_u32 v{ORD}, v{LANE}, 4, s{SB}"]
    for k in range(3):
        o += [f"v_add_u32 v{t}, {64 * k}, v{LANE}", f"v_mul_u32_u24 v{u}, 171, v{t}",
              f"v_bfe_u32 v{u}, v{u}, 12, 2", f"v_xor_b32 v{t}, v{t}, v{u}", f"v_lshlrev_b32 v{GO + k}, 4, v{t}"]
    o += [f"s_lshl_b32 s{SA}, s{TY}, 4", f"s_lshl_b32 s{SB}, s{WAVE}, 1", f"s_add_u32 s{SA}, s{SA}, s{SB}",
          f"s_mul_i32 s{SA}, s{SA}, {ROWB}", f"s_mul_i32 s{SB}, s{TX}, 3072", f"s_add_u32 s{OBASE}, s{SA}, s{SB}"]
    o += [f"s_sub_u32 s{SA}, s{WAVE}, 5", f"s_max_i32 s{SA}, s{SA}, 0", f"s_add_u32 s{SA}, s{SA}, s{WAVE}",
          f"s_lshl_b32 s{SA}, s{SA}, 8", f"s_add_u32 s{SA}, s{SA}, {TAB}",
          f"v_lshl_add_u32 v{T0}, v{LANE}, 2, s{SA}"]
    o += [f"v_mov_b32 v{CACC + i}, 0" for i in range(12)]
    return o


def tables_and_frags():
    o = ["s_waitcnt vmcnt(19)"]
    o += stamp("dw")
    for i in range(2):
        o += [f"v_lshlrev_b32 v{BB + 12 + i}, 16, v{BB + 12 + i}", f"v_mul_f32 v{BB + 12 + i}, s{SCALE}, v{BB + 12 + i}"]
    o += [f"ds_write_b32 v{T0}, v{BB + 12}", f"ds_write_b32 v{T0}, v{BB + 13} offset:256",
          "s_waitcnt lgkmcnt(0)", "s_barrier"]
    for b in range(4):
        for ac in range(3):
            for q in range(4):
                for pp in range(2):
                    d = AF + 48 * b + 16 * ac + 4 * q + 2 * pp
                    o += [f"ds_read_b64_tr_b16 {vr(d, 2)}, v{BB + q} offset:{960 * pp + 16 * (4 * ac + b)}"]
    o += ["s_waitcnt lgkmcnt(0)"]
    o += stamp("frags")
    o += ["s_waitcnt vmcnt(9)", "s_barrier"]
    o += stamp("x")
    return o


SUM, SQ = TMP + 20, TMP + 22


def conv():
    o = []
    steps = [(b, q, ac) for b in range(4) for q in range(4) for ac in range(3)]

    def reads(nn):
        b, q, ac = steps[nn]
        r = []
        for hb in range(2):
            i = 2 * q + hb
            pat, off = [(0, 7680 * i), (1, 7680 * (i - 3)), (i - 4, 0)][min(i // 3, 2)]
            if b and ac == 0 and i in (0, 3, 6, 7):
                r += [f"v_xor_b32 v{CP + pat}, {16 * (b ^ (b - 1))}, v{CP + pat}"]
            r += [f"ds_read_b128 {vr(BB + 8 * (nn % 4) + 4 * hb, 4)}, v{CP + pat} offset:{off + 64 * ac}"]
        return r
    for nn in range(4):
        o += reads(nn)
    for nn, (b, q, ac) in enumerate(steps):
        left = min(3, 47 - nn)
        o += [f"s_waitcnt lgkmcnt({2 * left})"]
        d = CACC + 12 * b + 4 * ac
        o += [f"v_smfmac_f32_16x16x64_bf16 {vr(d, 4)}, {vr(AF + 48 * b + 16 * ac + 4 * q, 4)}, "
              f"{vr(BB + 8 * (nn % 4), 8)}, v{IDX}"]
        if nn + 4 < 48:
            o += reads(nn + 4)
        if b == 0 and q == 3:
            o += [f"v_mov_b32 v{CACC + 12 + 4 * ac + i}, 0" for i in range(4)]
        if b in (1, 2) and q < 3:
            k = 3 * q + ac
            lo, hi = 12 * k // 9, 12 * (k + 1) // 9
            o += [f"v_mov_b32 v{CACC + 12 * (b + 1) + i}, 0" for i in range(lo, hi)]
    return o


def cacc(cg, r):
    return CACC + 12 * (cg % 4) + 4 * (cg // 4) + r


def layernorm():
    o = []
    o += [f"ds_read_b128 {vr(XRES + 8 * a, 4)}, v{XRA} offset:{64 * a}" for a in range(3)]
    o += [f"v_xor_b32 v{XRA}, 32, v{XRA}"]
    o += [f"ds_read_b128 {vr(XRES + 8 * a + 4, 4)}, v{XRA} offset:{64 * a}" for a in range(3)]
    s = [TMP + i for i in range(4)]
    q = [TMP + 4 + i for i in range(4)]
    for i in range(4):
        o += [f"v_add_f32 v{s[i]}, v{CACC + i}, v{CACC + 4 + i}", f"v_mul_f32 v{q[i]}, v{CACC + i}, v{CACC + i}"]
    for i in range(4):
        o += [f"v_fmac_f32 v{q[i]}, v{CACC + 4 + i}, v{CACC + 4 + i}"]
    for j in range(8, 48):
        o += [f"v_add_f32 v{s[j % 4]}, v{s[j % 4]}, v{CACC + j}", f"v_fmac_f32 v{q[j % 4]}, v{CACC + j}, v{CACC + j}"]
    o += [f"v_add_f32 v{s[0]}, v{s[0]}, v{s[1]}", f"v_add_f32 v{q[0]}, v{q[0]}, v{q[1]}",
          f"v_add_f32 v{s[2]}, v{s[2]}, v{s[3]}", f"v_add_f32 v{q[2]}, v{q[2]}, v{q[3]}",
          f"v_add_f32 v{s[0]}, v{s[0]}, v{s[2]}", f"v_add_f32 v{q[0]}, v{q[0]}, v{q[2]}",
          f"v_mov_b32 v{s[1]}, v{s[0]}", f"v_mov_b32 v{q[1]}, v{q[0]}",
          f"v_permlane32_swap_b32 v{s[0]}, v{s[1]}", f"v_permlane32_swap_b32 v{q[0]}, v{q[1]}",
          f"v_add_f32 v{s[0]}, v{s[0]}, v{s[1]}", f"v_add_f32 v{q[0]}, v{q[0]}, v{q[1]}",
          f"v_mul_f32 v{s[0]}, {f32(1 / 96)}, v{s[0]}", f"v_mul_f32 v{q[0]}, {f32(1 / 96)}, v{q[0]}",
          f"v_fma_f32 v{q[0]}, -v{s[0]}, v{s[0]}, v{q[0]}", f"v_max_f32 v{q[0]}, 0, v{q[0]}",
          f"v_add_f32 v{q[0]}, {f32(1e-5)}, v{q[0]}", f"v_rsq_f32 v{q[0]}, v{q[0]}",
          f"v_mul_f32 v{q[0]}, {f32(BETA)}, v{q[0]}", f"v_mul_f32_e64 v{q[1]}, -v{s[0]}, v{q[0]}"]
    o += ["s_waitcnt vmcnt(0) lgkmcnt(0)", "s_barrier"]
    o += stamp("xdead")
    o += D(-1, 0)
    o += wdma(3)
    for cg in range(12):
        for r in range(4):
            o += [f"v_fma_f32 v{cacc(cg, r)}, v{cacc(cg, r)}, v{q[0]}, v{q[1]}"]
        o += [f"v_cvt_pk_bf16_f32 v{BOP + 2 * cg + i}, v{cacc(cg, 2 * i)}, v{cacc(cg, 2 * i + 1)}" for i in range(2)]
    o += [f"v_mov_b32 v{GR + 4 + i}, 0" for i in range(4)]
    o += ["s_waitcnt lgkmcnt(0)"]
    o += [f"ds_read_b128 {vr(ACC2 + 4 * i, 4)}, v{AGAM} offset:{B2OFF + 64 * (i // 2) + 16 * (i % 2)}" for i in range(12)]
    o += stamp("ln")
    return o


def mf(d, a, b, c):
    return f"v_mfma_f32_32x32x16_bf16 {vr(d, 16)}, {vr(a, 4)}, {vr(b, 4)}, {vr(c, 16)}"


def hreg(h, i):
    return ACC1 + 16 * ((h // 2) % 2) + 8 * (h % 2) + i


def treg(h, i):
    return TR + 8 * (h % 2) + i


def greg(h):
    return GR + 4 * (h % 2)


def ok(h):
    return 0 <= h < 24


def gemm2(h, frag):
    return [mf(ACC2 + 16 * m, frag + 4 * m, greg(h), ACC2 + 16 * m) for m in range(3)]


def S(b):
    T = [f"v_rcp_f32 v{treg(b - 1, i)}, v{treg(b - 1, i)}" for i in range(8) if ok(b - 1)]
    T += [f"v_exp_f32 v{treg(b, i)}, v{treg(b, i)}" for i in range(8) if ok(b)]
    cv = [f"v_cvt_pk_bf16_f32 v{greg(b - 2) + i}, v{hreg(b - 2, 2 * i)}, v{hreg(b - 2, 2 * i + 1)}"
          for i in range(4) if ok(b - 2)]
    ms = []
    if b % 2 and b <= 21:
        d = ACC1 + 16 * (((b + 1) // 2) % 2)
        ms = [mf(d, W1F + 4 * k, BOP + 4 * k, BIAS if k == 0 else d) for k in range(6)]
    elif b == 25:
        ms = gemm2(23, W1F)
    elif b % 2 == 0 and 2 <= b <= 24:
        ms = gemm2(b - 3, W2F) + gemm2(b - 2, W2F + 12)
    o = list(cv)
    for m in ms:
        o += [m] + T[:3]
        T = T[3:]
    return o + T


def F(b):
    o = [f"v_add_f32 v{treg(b, i)}, 1.0, v{treg(b, i)}" for i in range(8) if ok(b)]
    o += [f"v_mul_f32 v{hreg(b - 1, i)}, v{hreg(b - 1, i)}, v{treg(b - 1, i)}" for i in range(8) if ok(b - 1)]
    if ok(b + 1):
        o += [f"v_fmaak_f32 v{treg(b + 1, i)}, v{hreg(b + 1, i)}, v{hreg(b + 1, i)}, {f32(CGELU)}" for i in range(8)]
        o += [f"v_mul_f32 v{treg(b + 1, i)}, v{hreg(b + 1, i)}, v{treg(b + 1, i)}" for i in range(8)]
    return o


def w2reads(h, frag, base):
    off = (h // 4 - base) * PAIR + 12288 + 3072 * (h % 4)
    return [f"ds_read_b64_tr_b16 {vr(frag + 4 * m + 2 * hf, 2)}, v{AW2} offset:{off + 1536 * hf + 64 * m}"
            for m in range(3) for hf in range(2)]


def D(b, base):
    if b % 2 and b <= 21:
        ch = (b + 1) // 2
        off = (ch // 2 - base) * PAIR + 512 * (ch % 2)
        o = [f"ds_read_b128 {vr(BIAS + 4 * k, 4)}, v{ABI} offset:{128 * (ch - 2 * base) + 32 * k}" for k in range(4)]
        return o + [f"ds_read_b64_tr_b16 {vr(W1F + 2 * k, 2)}, v{AW1} offset:{off + 1024 * k}" for k in range(12)]
    if b == 25:
        return w2reads(23, W1F, base)
    if b % 2 == 0 and 2 <= b <= 24:
        return (w2reads(b - 3, W2F, base) if ok(b - 3) else []) + w2reads(b - 2, W2F + 12, base)
    return []


def block(role, b, base):
    w = ["s_waitcnt lgkmcnt(0)"]
    if role == "A":
        return ["s_setprio 2"] + w + S(b) + ["s_setprio 0"] + D(b + 1, base) + F(b)
    return w + D(b + 1, base) + S(b) + F(b)


def mlp_head(role):
    o = [] if role == "A" else ["s_setprio 1"]
    o += [f"s_mov_b32 s{ITER}, 0"]
    for b in (-1, 0, 1):
        o += block(role, b, 0)
    return o


def mlp_loop(role):
    o = [f"L_loop{role}:", f"s_cmp_lg_u32 s{ITER}, 2", f"s_cbranch_scc1 L_go{role}",
         "s_waitcnt vmcnt(0)", "s_barrier", f"L_go{role}:"]
    for b in range(2, 6):
        o += block(role, b, 0)
    o += [f"v_add_u32 v{AW1}, {PAIR}, v{AW1}", f"v_add_u32 v{AW2}, {PAIR}, v{AW2}", f"v_add_u32 v{ABI}, 0x100, v{ABI}",
          f"s_add_u32 s{ITER}, s{ITER}, 1", f"s_cmp_lt_u32 s{ITER}, 5", f"s_cbranch_scc1 L_loop{role}"]
    return o


def mlp_tail(role):
    o = []
    for b in range(22, 26):
        o += block(role, b, 5)
    return o


def epilogue():
    o = ["s_setprio 0"]
    o += stamp("mlp")
    GAM = W2F
    for half in range(2):
        o += [f"ds_read_b128 {vr(GAM + 4 * i, 4)}, v{AGAM} offset:{GAMOFF + 64 * (3 * half + i // 2) + 16 * (i % 2)}"
              for i in range(6)]
        for c3 in range(3):
            ci = 3 * half + c3
            for j in range(4):
                o += [f"v_lshlrev_b32 v{TMP + 8 * c3 + 2 * j}, 16, v{XRES + 4 * ci + j}",
                      f"v_and_b32 v{TMP + 8 * c3 + 2 * j + 1}, 0xffff0000, v{XRES + 4 * ci + j}"]
        o += ["s_waitcnt lgkmcnt(0)"]
        for c3 in range(3):
            ci = 3 * half + c3
            for j in range(8):
                o += [f"v_fmac_f32 v{TMP + 8 * c3 + j}, v{ACC2 + 8 * ci + j}, v{GAM + 8 * c3 + j}"]
            for j in range(4):
                o += [f"v_cvt_pk_bf16_f32 v{BOP + 4 * ci + j}, v{TMP + 8 * c3 + 2 * j}, v{TMP + 8 * c3 + 2 * j + 1}"]
    o += [f"v_xor_b32 v{T0}, 32, v{OW}"]
    for ci in range(6):
        o += [f"ds_write_b128 v{T0 if ci % 2 else OW}, {vr(BOP + 4 * ci, 4)} offset:{64 * (ci // 2)}"]
    o += ["s_waitcnt lgkmcnt(0)"]
    for k in range(6):
        o += [f"ds_read_b128 {vr(ACC1 + 4 * k, 4)}, v{ORD} offset:{1024 * k}"]
    o += [f"s_add_u32 s{SA}, s{OBASE}, {ROWB}"]
    for k in range(6):
        o += [f"s_waitcnt lgkmcnt({5 - k})",
              f"buffer_store_dwordx4 {vr(ACC1 + 4 * k, 4)}, v{GO + k % 3}, s[{SO}:{SO + 3}], s{OBASE if k < 3 else SA} offen {OPT['snt']}"]
    if OPT["stamps"]:
        o += stamp("issued_st") + ["s_waitcnt vmcnt(0)"] + stamp("end")
        o += ["s_memrealtime s[96:97]", "s_getreg_b32 s98, hwreg(HW_REG_HW_ID)", "s_waitcnt lgkmcnt(0)",
              f"s_lshl_b32 s{SA}, s2, 3", f"s_add_u32 s{SA}, s{SA}, s{WAVE}", f"s_lshl_b32 s{SA}, s{SA}, 6",
              f"v_mov_b32 v1, s{SA}"]
        n = nstamp[0]
        for i in range(n):
            o += [f"v_mov_b32 v{16 + i}, s{STAMP + 2 * i}"]
        o += [f"v_mov_b32 v{16 + i}, 0" for i in range(n, 14)]
        o += ["v_mov_b32 v30, s96", "v_mov_b32 v31, s98"]
        o += [f"global_store_dwordx4 v1, {vr(16 + 4 * i, 4)}, s[20:21] offset:{16 * i}" for i in range(4)]
    return o


def main():
    segs = {}
    segs["setup"] = setup()
    segs["addr"] = addresses()
    segs["frags"] = tables_and_frags()
    segs["conv"] = conv() + stamp("conv")
    segs["ln"] = layernorm() + [f"s_cmp_ge_u32 s{WAVE}, 4", "s_cbranch_scc0 L_roleB"]
    for r in "AB":
        segs["head" + r] = mlp_head(r)
        segs["loop" + r] = mlp_loop(r)
        segs["tail" + r] = mlp_tail(r)
    segs["tailA"] += ["s_branch L_epi"]
    segs["headB"] = [".p2align 3", "L_roleB:"] + segs["headB"]
    segs["epi"] = ["L_epi:"] + epilogue()
    traces = {r: ["setup", "addr", "frags", "conv", "ln", "head" + r, "loop" + r, "loop" + r, "tail" + r, "epi"] for r in "AB"}
    fix(segs, traces, verbose=bool(OPT.get("v")))
    ref = open(f"cdna_kernels/{KN}.s.ref").read().split("\n")
    head = [l for l in ref if l.startswith(";") and "@launch" not in l]
    order = ["setup", "addr", "frags", "conv", "ln", "headA", "loopA", "tailA", "headB", "loopB", "tailB", "epi"]
    out = head + [f"; @launch grid=(200,1,1) block=(512,1,1) lds={LDS_BYTES}",
                  '.amdgcn_target "amdgcn-amd-amdhsa--gfx950"', ".text", f".globl {KN}_kernel", ".p2align 8",
                  f".type {KN}_kernel,@function", f"{KN}_kernel:"]
    for s in order:
        out += [f"; ---- {s}"] + [l if l.endswith(":") else "    " + l.rstrip() for l in segs[s]]
    out += ["L_end:", "    s_endpgm", "L_codeend:",
            '.section .rodata,"a"', ".p2align 6", f".amdhsa_kernel {KN}_kernel",
            "  .amdhsa_next_free_vgpr 256", "  .amdhsa_next_free_sgpr 102", "  .amdhsa_accum_offset 256",
            "  .amdhsa_group_segment_fixed_size 0", "  .amdhsa_kernarg_size 80", "  .amdhsa_user_sgpr_count 2",
            "  .amdhsa_user_sgpr_kernarg_segment_ptr 1", "  .amdhsa_system_sgpr_workgroup_id_x 1",
            ".end_amdhsa_kernel"]
    open(sys.argv[1], "w").write("\n".join(out) + "\n")
    if OPT["stamps"]:
        open(sys.argv[1] + ".stamps", "w").write(" ".join(STAMPS))


main()
```

```python
import math
import struct
import sys

from hazard import fix

KN = "standalone__modern_conv_block_convnext__vision"
OPT = dict(xnt="nt", snt="nt", stamps=0, pf=1, roles="AB", set="all", al=0, shift=0)
for a in sys.argv[2:]:
    k, v = a.split("=")
    OPT[k] = int(v) if v.lstrip("-").isdigit() else v


def f32(x):
    return "0x%08x" % struct.unpack("<I", struct.pack("<f", x))[0]


LOG2E = 1.4426950408889634
K1 = 2.0 * math.sqrt(2.0 / math.pi)
BETA = -((LOG2E * K1 * 0.044715) ** (1.0 / 3.0))
CGELU = LOG2E * K1 / -BETA

PAIR = 24576
XIMG = 3 * PAIR
DWT = XIMG + 76800
TAB = DWT + 8192
FL = TAB + 4096
LDS_BYTES = FL + 64
B2OFF, GAMOFF = 2048, 3072
XB = 224 * 224 * 192
ROWB = 224 * 192
BIG = 0x20000000

LANE, XV, WV1, IDX, AW1, AW2, ABI, XRA, OW, WV2, GO, AGAM, FLW, FLR = 0, 1, 2, 3, 4, 5, 6, 7, 8, 9, 10, 13, 14, 15
CACC, AF, BB, CP = 16, 28, 220, 252
ACC2, ACC1, BOP, W1F, W2F, GR, TR, BIAS, XRES, TMP = 16, 64, 96, 120, 144, 168, 176, 192, 208, 232
SX, SDW, SW1, SW2, ST, SO = 24, 28, 32, 36, 16, 40
P_B1, P_B2, P_GA = 4, 6, 8
WAVE, KQ, TY, TX, SROW, SM0, SA, SB, SC, OBASE, PR, XK, WG1, WM0, ITER, SCALE = range(48, 64)
STAMP = 64
nstamp = [0]


def stamp(name, drain=False, same=False):
    if not OPT["stamps"] or name not in STAMPSETS[OPT["set"]]:
        return []
    same = name in STAMPS
    if drain:
        return stamp(name) + ["s_waitcnt lgkmcnt(0)"]
    if same:
        n = STAMPS.index(name)
    else:
        n = nstamp[0]
        nstamp[0] += 1
        STAMPS.append(name)
    ins = "s_memrealtime" if OPT["stamps"] == 2 else "s_memtime"
    return [f"{ins} s[{STAMP + 2 * n}:{STAMP + 2 * n + 1}]"]


STAMPS = []
STAMPSETS = {
    "all": "start karg issued dw frags x conv ln mlp issued_st end".split(),
    "pro": "start karg issued addr landed tab dw frags x conv stats ln end".split(),
    "m2": "start x conv ln head loop mlp poll lds issued_st end".split(),
    "mlp": "start ln head it0 it1 it2 it3 it4 mlp poll lds issued_st end".split(),
}


def vr(b, n):
    return f"v[{b}:{b + n - 1}]"


def srd(base, size):
    return [f"s_mov_b32 s{base + 2}, {size}", f"s_mov_b32 s{base + 3}, 0x20000"]


def poll(name, ka=None, kb=None, tmp=None):
    def chk(reg, k):
        k = k if isinstance(k, str) else hex((0x80 - k) * 0x01010101)
        return [f"v_readfirstlane_b32 s{SA}, v{reg}", f"s_add_u32 s{SA}, s{SA}, {k}",
                f"s_andn2_b32 s{SA}, 0x80808080, s{SA}", f"s_cbranch_scc1 {name}"]
    if ka is not None and kb is not None:
        return [f"{name}:", f"ds_read_b64 {vr(tmp, 2)}, v{FLR}", "s_waitcnt lgkmcnt(0)"] + chk(tmp, ka) + chk(tmp + 1, kb)
    off = 0 if kb is None else 4
    return [f"{name}:", f"ds_read_b32 v{tmp}, v{FLR} offset:{off}", "s_waitcnt lgkmcnt(0)"] + chk(tmp, kb if off else ka)


def recheck(name, k, tmp):
    kk = k if isinstance(k, str) else hex((0x80 - k) * 0x01010101)
    return [f"v_readfirstlane_b32 s{SA}, v{tmp}", f"s_add_u32 s{SA}, s{SA}, {kk}",
            f"s_andn2_b32 s{SA}, 0x80808080, s{SA}", f"s_cbranch_scc0 {name}_ok"] + poll(name, None, k, tmp) + [f"{name}_ok:"]


def flag_read(tmp):
    return [f"ds_read_b32 v{tmp}, v{FLR} offset:4"]


def signal(stage, tmp):
    return [f"v_mov_b32 v{tmp}, {stage}", f"ds_write_b8 v{FLW}, v{tmp}"]


def setup():
    o = []
    o += stamp("start")
    o += [f"s_load_dwordx2 s[{SX}:{SX + 1}], s[0:1], 0",
          f"s_load_dwordx2 s[{SDW}:{SDW + 1}], s[0:1], 8",
          f"s_load_dwordx2 s[{SW1}:{SW1 + 1}], s[0:1], 16",
          f"s_load_dwordx2 s[{P_B1}:{P_B1 + 1}], s[0:1], 24",
          f"s_load_dwordx2 s[{SW2}:{SW2 + 1}], s[0:1], 32",
          f"s_load_dwordx2 s[{P_B2}:{P_B2 + 1}], s[0:1], 40",
          f"s_load_dwordx2 s[{P_GA}:{P_GA + 1}], s[0:1], 48",
          f"s_load_dwordx2 s[{SO}:{SO + 1}], s[0:1], 56"]
    if OPT["stamps"]:
        o += ["s_load_dwordx2 s[20:21], s[0:1], 72", "s_memrealtime s[100:101]"]
    o += [f"v_readfirstlane_b32 s{WAVE}, v0",
          f"s_and_b32 s{SA}, s2, 7", f"s_lshr_b32 s{SB}, s2, 3",
          f"s_cmp_ge_u32 s{SB}, 25", "s_cbranch_scc1 L_end",
          f"s_mul_i32 s{SA}, s{SA}, 25", f"s_add_u32 s{SA}, s{SA}, s{SB}",
          f"s_cmp_ge_u32 s{SA}, 196", "s_cbranch_scc1 L_end",
          f"v_and_b32 v{LANE}, 63, v0",
          f"s_lshr_b32 s{WAVE}, s{WAVE}, 6",
          f"s_mul_hi_u32 s{TY}, s{SA}, 0x12492493",
          f"s_mul_i32 s{SB}, s{TY}, 14", f"s_sub_u32 s{TX}, s{SA}, s{SB}",
          f"s_and_b32 s{KQ}, s{WAVE}, 3",
          f"v_mov_b32 v{FLR}, {FL}", f"v_mov_b32 v{IDX}, 0", f"v_add_u32 v{FLW}, s{WAVE}, v{FLR}",
          f"ds_write_b8 v{FLW}, v{IDX}",
          f"v_lshlrev_b32 v{WV2}, 4, v{LANE}",
          f"s_cmp_lt_u32 s{WAVE}, 4", "s_cbranch_scc1 L_issueA"]
    return o


def xrow(r):
    return [f"s_add_u32 m0, s{SM0}, {3840 * r}", f"s_add_u32 s{SA}, s{SROW}, {ROWB * r}",
            f"buffer_load_dwordx4 v{XV}, s[{SX}:{SX + 3}], s{SA} offen {OPT['xnt']} lds"]


def issue_b():
    a, b, c = BB + 14, BB + 15, BB + 16
    o = [f"v_mul_u32_u24 v{a}, 43, v{LANE}", f"v_lshrrev_b32 v{a}, 9, v{a}",
         f"v_mul_u32_u24 v{b}, 12, v{a}", f"v_sub_u32 v{b}, v{LANE}, v{b}",
         f"s_mul_i32 s{SB}, s{KQ}, 5", f"v_add_u32 v{a}, s{SB}, v{a}",
         f"v_bfe_u32 v{c}, v{a}, 2, 2", f"v_xor_b32 v{b}, v{b}, v{c}",
         f"s_lshl_b32 s{SB}, s{TX}, 4", f"s_sub_u32 s{SB}, s{SB}, 2", f"v_add_u32 v{a}, s{SB}, v{a}",
         f"v_min_u32 v{a}, 0xe0, v{a}", f"v_add_u32 v{c}, 32, v{a}", f"v_lshrrev_b32 v{c}, 8, v{c}",
         f"v_mul_u32_u24 v{a}, 0xc0, v{a}", f"v_lshl_add_u32 v{a}, v{b}, 4, v{a}",
         f"v_lshl_add_u32 v{XV}, v{c}, 29, v{a}",
         f"s_lshl_b32 s{SC}, s{TY}, 4", f"s_sub_u32 s{SC}, s{SC}, 2", f"s_mul_i32 s{SROW}, s{SC}, {ROWB}",
         f"s_mul_i32 s{SM0}, s{KQ}, 960", f"s_add_u32 s{SM0}, s{SM0}, {XIMG}",
         f"s_cmp_eq_u32 s{TY}, 0", f"s_cselect_b32 s{SB}, {BIG}, s{SROW}",
         f"s_sub_u32 s{PR}, 11, s{WAVE}"]
    o += [f"v_bfe_u32 v{a}, v{LANE}, 2, 3", f"v_mul_u32_u24 v{a}, 0x300, v{a}", f"v_lshrrev_b32 v{b}, 5, v{LANE}",
          f"v_lshl_add_u32 v{a}, v{b}, 6, v{a}", f"v_and_b32 v{b}, 3, v{LANE}", f"v_lshl_add_u32 v{WV1}, v{b}, 4, v{a}",
          f"s_mul_i32 s{WM0}, s{KQ}, 3072", f"s_mul_i32 s{WG1}, s{KQ}, 18432"]
    o += srd(SX, XB) + srd(SW1, 73728) + srd(SW2, 73728)
    o += ["s_bfm_b64 exec, 60, 0", f"s_mov_b32 m0, s{SM0}", "s_waitcnt lgkmcnt(0)", "s_barrier"]
    o += stamp("karg")
    o += [f"buffer_load_dwordx4 v{XV}, s[{SX}:{SX + 3}], s{SB} offen {OPT['xnt']} lds",
          f"s_add_u32 m0, s{SM0}, 3840", f"s_add_u32 s{SB}, s{SB}, {ROWB}",
          f"buffer_load_dwordx4 v{XV}, s[{SX}:{SX + 3}], s{SB} offen {OPT['xnt']} lds"]
    for r in range(2, 10):
        o += xrow(r)
    o += ["s_mov_b64 exec, -1", "s_branch L_addr"]
    return o


TABV = BB + 8
PFV = BB + 31


def issue_a():
    a, b = BB + 14, BB + 15
    o = ["L_issueA:"]
    o += ["s_setprio 3"]
    o += [f"s_lshl_b32 s{SB}, s{KQ}, 11", f"s_sub_u32 s{SC}, s{SB}, 960", f"v_add_u32 v{a}, s{SC}, v{WV2}",
          f"v_add_u32 v{b}, 0x400, v{a}", f"s_add_u32 m0, s{SB}, {DWT}"]
    o += srd(SDW, 4800) + [f"s_mov_b32 s{ST + 3}, 0x20000"]
    o += [f"s_cmp_lt_u32 s{KQ}, 2", f"s_movk_i32 s{ST + 2}, 192", f"s_cmov_b32 s{ST + 2}, 768",
          f"s_cselect_b32 s{SC}, s{KQ}, 0", f"s_lshl_b32 s{SC}, s{SC}, 9",
          f"v_lshl_add_u32 v{TABV + 2}, v{LANE}, 3, s{SC}", f"s_mov_b32 s{PR}, s{WAVE}",
          "s_waitcnt lgkmcnt(0)", "s_barrier"]
    o += stamp("karg", same=True)
    o += [f"buffer_load_dwordx4 v{a}, s[{SDW}:{SDW + 3}], 0 offen lds",
          f"s_add_u32 m0, m0, 0x400",
          f"s_cmp_eq_u32 s{KQ}, 2", f"s_cselect_b64 s[{ST}:{ST + 1}], s[{P_B2}:{P_B2 + 1}], s[{P_B1}:{P_B1 + 1}]",
          f"buffer_load_dwordx4 v{b}, s[{SDW}:{SDW + 3}], 0 offen lds",
          f"s_cmp_eq_u32 s{KQ}, 3", f"s_cselect_b64 s[{ST}:{ST + 1}], s[{P_GA}:{P_GA + 1}], s[{ST}:{ST + 1}]",
          f"s_mov_b32 s{SCALE}, {f32(BETA)}", f"s_cmov_b32 s{SCALE}, {f32(1.0 / BETA)}",
          f"buffer_load_dwordx2 {vr(TABV, 2)}, v{TABV + 2}, s[{ST}:{ST + 3}], 0 offen"]
    if OPT["pf"]:
        o += ["s_getpc_b64 s[14:15]", "L_pc:", f"s_lshl_b32 s{SB}, s{KQ}, 13", f"v_lshl_add_u32 v{a}, v{LANE}, 7, s{SB}",
              f"v_min_u32 v{a}, L_codeend-L_pc-4, v{a}", f"global_load_dword v{PFV}, v{a}, s[14:15]"]
    return o


def wdma(pairs):
    o = []
    for p in pairs:
        for i in range(3):
            o += [f"s_add_u32 m0, s{WM0}, {PAIR * p + 1024 * i}", f"s_add_u32 s{SA}, s{WG1}, {128 * p + 6144 * i}",
                  f"buffer_load_dwordx4 v{WV1}, s[{SW1}:{SW1 + 3}], s{SA} offen lds"]
        o += [f"s_add_u32 m0, s{WM0}, {PAIR * p + 12288}", f"s_add_u32 s{SA}, s{WM0}, {12288 * p}"]
        o += [f"buffer_load_dwordx4 v{WV2}, s[{SW2}:{SW2 + 3}], s{SA} offen offset:{1024 * i} lds" for i in range(3)]
    return o


MASK = BB + 4


def addresses():
    o = ["L_addr:"]
    o += stamp("issued")
    n, g, hf, s, rho, c, t, u, w = (BB + 14 + i for i in range(9))
    o += [f"v_and_b32 v{n}, 15, v{LANE}", f"v_lshrrev_b32 v{g}, 4, v{LANE}", f"v_lshrrev_b32 v{hf}, 5, v{LANE}",
          f"v_and_b32 v{s}, 1, v{g}", f"v_bfe_u32 v{rho}, v{LANE}, 2, 2", f"v_and_b32 v{c}, 3, v{LANE}"]
    o += [f"v_mul_u32_u24 v{IDX}, 0x5555, v{c}"]
    o += [f"v_and_b32 v{t}, 2, v{c}", f"v_and_b32 v{u}, 1, v{c}", f"v_mul_u32_u24 v{u}, 960, v{u}",
          f"v_lshlrev_b32 v{t}, 2, v{t}", f"v_lshl_add_u32 v{t}, v{rho}, 4, v{t}",
          f"v_sub_u32 v{t}, v{t}, v{u}", f"v_add_u32 v{t}, {DWT + 960}, v{t}",
          f"v_lshlrev_b32 v{w}, 3, v{g}", f"s_movk_i32 s{SB}, 0xc0"]
    T0TAB = [[0, 2, 10, 12], [20, 22, 1, 3], [11, 13, 21, 23], [4, 14, 24, 30]]
    for q in range(4):
        cst = sum(v << (8 * i) for i, v in enumerate(T0TAB[q]))
        o += [f"s_mov_b32 s{SA}, {cst}", f"v_bfe_u32 v{BB + q}, s{SA}, v{w}, 8",
              f"v_mad_u32_u24 v{BB + q}, v{BB + q}, s{SB}, v{t}"]
    o += [f"v_bfe_i32 v{t}, v{LANE}, 3, 1", f"v_lshrrev_b32 v{MASK + 2}, 16, v{t}",
          f"v_and_b32 v{MASK + 3}, 0xffff0000, v{t}", f"v_xor_b32 v{MASK}, 0xffff, v{MASK + 2}",
          f"v_xor_b32 v{MASK + 1}, 0xffff0000, v{MASK + 3}"]
    o += srd(SO, XB)

    def xaddr(dst, col, row, extra=None):
        r = [f"v_bfe_u32 v{t}, v{col}, 2, 2"]
        if extra is not None:
            r += [f"v_xor_b32 v{t}, v{t}, v{extra}"]
        r += [f"v_mul_u32_u24 v{u}, 0xc0, v{col}", f"v_lshl_add_u32 v{t}, v{t}, 4, v{u}",
              f"v_mul_u32_u24 v{u}, 0xf00, v{row}", f"v_add3_u32 v{dst}, v{t}, v{u}, s{SB}"]
        return r
    o += [f"s_mul_i32 s{SB}, s{PR}, 7680", f"s_add_u32 s{SB}, s{SB}, {XIMG}"]
    o += [f"v_lshl_add_u32 v{w}, v{hf}, 1, v{n}"] + xaddr(CP, w, s)
    o += [f"v_add_u32 v{w}, 1, v{w}"] + xaddr(CP + 1, w, s)
    o += [f"v_add_u32 v{w}, 4, v{n}"] + xaddr(CP + 2, w, g)
    o += [f"v_mul_u32_u24 v{u}, 7680, v{hf}", f"v_sub_u32 v{u}, v{CP + 2}, v{u}", f"v_add_u32 v{CP + 3}, 15360, v{u}"]
    o += [f"s_add_u32 s{SB}, s{SB}, 7680", f"v_add_u32 v{w}, 2, v{n}"] + xaddr(XRA, w, s, hf)
    o += [f"v_lshl_add_u32 v{t}, v{hf}, 2, v{rho}", f"v_lshlrev_b32 v{u}, 5, v{s}",
          f"v_lshl_add_u32 v{w}, v{c}, 3, v{u}", f"v_lshl_add_u32 v{AW1}, v{t}, 6, v{w}",
          f"v_mul_u32_u24 v{t}, 0xc0, v{t}", f"v_and_b32 v{w}, 1, v{c}", f"v_lshl_add_u32 v{u}, v{w}, 4, v{u}",
          f"v_lshrrev_b32 v{w}, 1, v{c}", f"v_lshl_add_u32 v{u}, v{w}, 3, v{u}", f"v_add_u32 v{AW2}, v{t}, v{u}",
          f"v_lshlrev_b32 v{t}, 4, v{hf}", f"v_add_u32 v{ABI}, {TAB}, v{t}",
          f"v_add_u32 v{AGAM}, v{ABI}, v{t}"]
    o += [f"s_mul_i32 s{SB}, s{WAVE}, 6144",
          f"v_bfe_u32 v{t}, v{n}, 1, 2", f"v_xor_b32 v{t}, v{t}, v{hf}", f"v_and_b32 v{u}, 31, v{LANE}",
          f"v_mul_u32_u24 v{u}, 0xc0, v{u}", f"v_lshl_add_u32 v{t}, v{t}, 4, v{u}", f"v_add_u32 v{OW}, s{SB}, v{t}"]
    for k in range(3):
        o += [f"v_add_u32 v{t}, {64 * k}, v{LANE}", f"v_mul_u32_u24 v{u}, 171, v{t}",
              f"v_bfe_u32 v{u}, v{u}, 12, 2", f"v_xor_b32 v{t}, v{t}, v{u}", f"v_lshlrev_b32 v{GO + k}, 4, v{t}"]
    o += [f"s_lshl_b32 s{SA}, s{TY}, 4", f"s_lshl_b32 s{SB}, s{PR}, 1", f"s_add_u32 s{SA}, s{SA}, s{SB}",
          f"s_mul_i32 s{SA}, s{SA}, {ROWB}", f"s_mul_i32 s{SB}, s{TX}, 3072", f"s_add_u32 s{OBASE}, s{SA}, s{SB}",
          f"s_sub_u32 s{XK}, 0x7f, s{KQ}", f"s_mul_i32 s{XK}, s{XK}, 0x01010101"]
    o += [f"v_mov_b32 v{CACC + i}, 0" for i in range(12)]
    o += stamp("addr")
    o += [f"s_cmp_lt_u32 s{WAVE}, 4", "s_cbranch_scc0 L_loadL"]
    return o


def tables_a():
    a = TABV
    o = [f"s_lshl_b32 s{SA}, s{KQ}, 10", f"s_add_u32 s{SA}, s{SA}, {TAB}", f"v_add_u32 v{a + 2}, s{SA}, v{WV2}",
         f"s_waitcnt vmcnt({1 if OPT['pf'] else 0})"] + stamp("landed") + [
         f"v_lshlrev_b32 v{a + 4}, 16, v{a}", f"v_and_b32 v{a + 5}, 0xffff0000, v{a}",
         f"v_lshlrev_b32 v{a + 6}, 16, v{a + 1}", f"v_and_b32 v{a + 7}, 0xffff0000, v{a + 1}"]
    o += [f"v_mul_f32 v{a + 4 + i}, s{SCALE}, v{a + 4 + i}" for i in range(4)]
    o += [f"ds_write_b128 v{a + 2}, {vr(a + 4, 4)}", "s_waitcnt lgkmcnt(0)"] + signal(1, a) + stamp("tab") + ["s_branch L_frags"]
    return o


def load_l():
    t = TABV
    m60, full = ["s_bfm_b64 exec, 60, 0"], ["s_mov_b64 exec, -1"]
    o = ["L_loadL:", "s_setprio 3", "s_waitcnt vmcnt(4)"] + stamp("landed") + signal(1, t)
    o += m60 + xrow(10) + xrow(11) + full + wdma([0])
    o += ["s_waitcnt vmcnt(10)"] + signal(2, t + 1) + m60 + xrow(12) + xrow(13)
    o += ["s_waitcnt vmcnt(10)"] + signal(3, t + 2) + xrow(14) + xrow(15)
    o += ["s_waitcnt vmcnt(10)"] + signal(4, t + 3) + xrow(16) + xrow(17)
    o += ["s_waitcnt vmcnt(6)"] + signal(5, t + 4) + xrow(18) + xrow(19) + full
    o += wdma([1]) + stamp("tab") + ["s_setprio 0"]
    return o


def frags():
    o = ["L_frags:"] + poll("L_pollDw", 1, None, TABV) + stamp("dw", True)
    items = [(ac, q, pp) for ac in range(3) for q in range(4) for pp in range(2)]

    def af(b, ac, q):
        return AF + 48 * b + 16 * ac + 4 * q

    def rd(k):
        ac, q, pp = items[k]
        return [f"ds_read_b64_tr_b16 {vr(af(3, ac, q) + 2 * pp, 2)}, v{BB + q} offset:{960 * pp + 64 * ac}"]
    for k in range(12):
        o += rd(k)
    for k, (ac, q, pp) in enumerate(items):
        if k % 4 == 0:
            o += [f"s_waitcnt lgkmcnt({min(8, 20 - k)})"]
            for kk in range(k + 12, min(k + 16, 24)):
                o += rd(kk)
        p = af(3, ac, q) + 2 * pp
        for b in range(4):
            for grp in range(2):
                o += [f"v_and_b32 v{af(b, ac, q) + 2 * pp + grp}, v{p + b // 2}, v{MASK + 2 * grp + b % 2}"]
    o += stamp("frags")
    o += [f"s_cmp_lt_u32 s{WAVE}, 4", "s_cbranch_scc1 L_preA"]
    return o


def pre_b():
    t = BB
    o = ["s_setprio 3", "s_waitcnt vmcnt(0)"] + signal(6, t) + wdma([2])
    o += poll("L_pollRows", None, 6, t + 2) + ["s_branch L_conv"]
    return o


def pre_a():
    return ["L_preA:", "s_waitcnt vmcnt(0)"] + poll("L_pollX", None, f"s{XK}", BB)


FV, PV = TMP + 8, TMP + 9
LS = [AF + 36 + i for i in range(4)]
LQ = [AF + 40 + i for i in range(4)]


def stats(b):
    o = []
    for j in range(12):
        v = CACC + 12 * b + j
        if b == 0 and j < 4:
            o += [f"v_add_f32 v{LS[j]}, v{v}, v{v + 4}", f"v_mul_f32 v{LQ[j]}, v{v}, v{v}"]
        elif b == 0 and j < 8:
            o += [f"v_fmac_f32 v{LQ[j % 4]}, v{v}, v{v}"]
        else:
            o += [f"v_add_f32 v{LS[j % 4]}, v{LS[j % 4]}, v{v}", f"v_fmac_f32 v{LQ[j % 4]}, v{v}, v{v}"]
    return o


def conv():
    o = ["L_conv:"] + stamp("x", True)
    steps = [(b, q, ac) for b in range(4) for q in range(4) for ac in range(3)]

    def reads(nn):
        b, q, ac = steps[nn]
        r = []
        for hb in range(2):
            i = 2 * q + hb
            pat, off = [(0, 7680 * i), (1, 7680 * (i - 3)), (i - 4, 0)][min(i // 3, 2)]
            if b and ac == 0 and i in (0, 3, 6, 7):
                r += [f"v_xor_b32 v{CP + pat}, {16 * (b ^ (b - 1))}, v{CP + pat}"]
            r += [f"ds_read_b128 {vr(BB + 8 * (nn % 4) + 4 * hb, 4)}, v{CP + pat} offset:{off + 64 * ac}"]
        return r
    for nn in range(4):
        o += reads(nn)
    for nn, (b, q, ac) in enumerate(steps):
        left = min(3, 47 - nn)
        o += [f"s_waitcnt lgkmcnt({2 * left})"]
        d = CACC + 12 * b + 4 * ac
        o += [f"v_smfmac_f32_16x16x64_bf16 {vr(d, 4)}, {vr(AF + 48 * b + 16 * ac + 4 * q, 4)}, "
              f"{vr(BB + 8 * (nn % 4), 8)}, v{IDX}"]
        if nn + 4 < 48:
            o += reads(nn + 4)
        k = 3 * q + ac
        if b == 0 and q == 3:
            o += [f"v_mov_b32 v{CACC + 12 + 4 * ac + i}, 0" for i in range(4)]
        if b in (1, 2) and k < 9:
            o += [f"v_mov_b32 v{CACC + 12 * (b + 1) + i}, 0" for i in range(12 * k // 9, 12 * (k + 1) // 9)]
        if b and k >= 2:
            st = stats(b - 1)
            o += st[len(st) * (k - 2) // 10:len(st) * (k - 1) // 10]
    o += stamp("conv", True)
    return o


def cacc(cg, r):
    return CACC + 12 * (cg % 4) + 4 * (cg // 4) + r


def ln_stats():
    s, q = LS, LQ
    o = flag_read(FV)
    o += [f"ds_read_b128 {vr(XRES + 8 * a, 4)}, v{XRA} offset:{64 * a}" for a in range(3)]
    o += [f"v_xor_b32 v{XRA}, 32, v{XRA}"]
    o += [f"ds_read_b128 {vr(XRES + 8 * a + 4, 4)}, v{XRA} offset:{64 * a}" for a in range(3)]
    o += stats(3)[:12]
    o += ["s_waitcnt lgkmcnt(6)"] + recheck("L_pollW0", 5, FV)
    o += D(-1, 0)
    o += stats(3)[12:]
    o += [f"v_add_f32 v{s[0]}, v{s[0]}, v{s[1]}", f"v_add_f32 v{q[0]}, v{q[0]}, v{q[1]}",
          f"v_add_f32 v{s[2]}, v{s[2]}, v{s[3]}", f"v_add_f32 v{q[2]}, v{q[2]}, v{q[3]}",
          f"v_add_f32 v{s[0]}, v{s[0]}, v{s[2]}", f"v_add_f32 v{q[0]}, v{q[0]}, v{q[2]}",
          f"v_mov_b32 v{s[1]}, v{s[0]}", f"v_mov_b32 v{q[1]}, v{q[0]}",
          f"v_mov_b32 v{GR + 4}, 0",
          f"v_permlane32_swap_b32 v{s[0]}, v{s[1]}", f"v_permlane32_swap_b32 v{q[0]}, v{q[1]}",
          f"v_add_f32 v{s[0]}, v{s[0]}, v{s[1]}", f"v_add_f32 v{q[0]}, v{q[0]}, v{q[1]}",
          f"v_mul_f32 v{s[0]}, {f32(1 / 96)}, v{s[0]}", f"v_mul_f32 v{q[0]}, {f32(1 / 96)}, v{q[0]}",
          f"v_fma_f32 v{q[0]}, -v{s[0]}, v{s[0]}, v{q[0]}", f"v_max_f32 v{q[0]}, 0, v{q[0]}",
          f"v_add_f32 v{q[0]}, {f32(1e-5)}, v{q[0]}", f"v_rsq_f32 v{TMP}, v{q[0]}",
          f"v_mov_b32 v{GR + 5}, 0", f"v_mov_b32 v{GR + 6}, 0", f"v_mov_b32 v{GR + 7}, 0",
          f"v_mul_f32 v{TMP}, {f32(BETA)}, v{TMP}", f"v_mul_f32_e64 v{TMP + 1}, -v{s[0]}, v{TMP}",
          f"s_cmp_lt_u32 s{WAVE}, 4", f"s_cselect_b32 s{SA}, 2, 7", f"v_mov_b32 v{TMP + 2}, s{SA}",
          "s_waitcnt vmcnt(0) lgkmcnt(0)", f"ds_write_b8 v{FLW}, v{TMP + 2}"]
    o += stamp("stats")
    return o


def ln_norm():
    o = []
    for kk in range(6):
        for cg in (2 * kk, 2 * kk + 1):
            o += [f"v_fma_f32 v{cacc(cg, r)}, v{cacc(cg, r)}, v{TMP}, v{TMP + 1}" for r in range(4)]
        if kk:
            o += [mf(ACC1, W1F + 4 * (kk - 1), BOP + 4 * (kk - 1), BIAS if kk == 1 else ACC1)]
        for cg in (2 * kk, 2 * kk + 1):
            o += [f"v_cvt_pk_bf16_f32 v{BOP + 2 * cg + i}, v{cacc(cg, 2 * i)}, v{cacc(cg, 2 * i + 1)}" for i in range(2)]
    rd = [f"ds_read_b128 {vr(ACC2 + 4 * i, 4)}, v{AGAM} offset:{B2OFF + 64 * (i // 2) + 16 * (i % 2)}" for i in range(12)]
    o += rd[:2] + [mf(ACC1, W1F + 20, BOP + 20, ACC1)] + rd[2:]
    o += stamp("ln")
    o += [f"s_cmp_lt_u32 s{WAVE}, 4", "s_cbranch_scc0 L_late"]
    return o


def mf(d, a, b, c):
    return f"v_mfma_f32_32x32x16_bf16 {vr(d, 16)}, {vr(a, 4)}, {vr(b, 4)}, {vr(c, 16)}"


def hreg(h, i):
    return ACC1 + 16 * ((h // 2) % 2) + 8 * (h % 2) + i


def treg(h, i):
    return TR + 8 * (h % 2) + i


def greg(h):
    return GR + 4 * (h % 2)


def ok(h):
    return 0 <= h < 24


def gemm2(h, frag):
    return [mf(ACC2 + 16 * m, frag + 4 * m, greg(h), ACC2 + 16 * m) for m in range(3)]


def S(b):
    T = [f"v_rcp_f32 v{treg(b - 1, i)}, v{treg(b - 1, i)}" for i in range(8) if ok(b - 1)]
    T += [f"v_exp_f32 v{treg(b, i)}, v{treg(b, i)}" for i in range(8) if ok(b)]
    cv = [f"v_cvt_pk_bf16_f32 v{greg(b - 2) + i}, v{hreg(b - 2, 2 * i)}, v{hreg(b - 2, 2 * i + 1)}"
          for i in range(4) if ok(b - 2)]
    ms = []
    if b % 2 and b <= 21:
        d = ACC1 + 16 * (((b + 1) // 2) % 2)
        ms = [mf(d, W1F + 4 * k, BOP + 4 * k, BIAS if k == 0 else d) for k in range(6)]
    elif b == 25:
        ms = gemm2(23, W1F)
    elif b % 2 == 0 and 2 <= b <= 24:
        ms = gemm2(b - 3, W2F) + gemm2(b - 2, W2F + 12)
    o = list(cv)
    for m in ms:
        o += [m] + T[:3]
        T = T[3:]
    return o + T


def F(b):
    o = [f"v_add_f32 v{treg(b, i)}, 1.0, v{treg(b, i)}" for i in range(8) if ok(b)]
    o += [f"v_mul_f32 v{hreg(b - 1, i)}, v{hreg(b - 1, i)}, v{treg(b - 1, i)}" for i in range(8) if ok(b - 1)]
    if ok(b + 1):
        o += [f"v_fmaak_f32 v{treg(b + 1, i)}, v{hreg(b + 1, i)}, v{hreg(b + 1, i)}, {f32(CGELU)}" for i in range(8)]
        o += [f"v_mul_f32 v{treg(b + 1, i)}, v{hreg(b + 1, i)}, v{treg(b + 1, i)}" for i in range(8)]
    return o


def w2reads(h, frag, base):
    off = (h // 4 - base) * PAIR + 12288 + 3072 * (h % 4)
    return [f"ds_read_b64_tr_b16 {vr(frag + 4 * m + 2 * hf, 2)}, v{AW2} offset:{off + 1536 * hf + 64 * m}"
            for m in range(3) for hf in range(2)]


def D(b, base):
    if b % 2 and b <= 21:
        ch = (b + 1) // 2
        off = (ch // 2 - base) * PAIR + 512 * (ch % 2)
        o = [f"ds_read_b128 {vr(BIAS + 4 * k, 4)}, v{ABI} offset:{128 * (ch - 2 * base) + 32 * k}" for k in range(4)]
        return o + [f"ds_read_b64_tr_b16 {vr(W1F + 2 * k, 2)}, v{AW1} offset:{off + 1024 * k}" for k in range(12)]
    if b == 25:
        return w2reads(23, W1F, base)
    if b % 2 == 0 and 2 <= b <= 24:
        return (w2reads(b - 3, W2F, base) if ok(b - 3) else []) + w2reads(b - 2, W2F + 12, base)
    return []


def block(role, b, base, pre=(), post=()):
    w = ["s_waitcnt lgkmcnt(0)"]
    d = list(pre) + D(b + 1, base) + list(post)
    if role == "A":
        k = 1 if pre else 0
        return ["s_setprio 2"] + w + S(b) + d[:k] + ["s_setprio 0"] + d[k:] + F(b)
    if role == "B":
        return w + d + ["s_setprio 1"] + S(b) + ["s_setprio 3"] + F(b)
    return w + d + S(b) + F(b)


def mlp_head(grp, role):
    o = []
    if grp == "L":
        o += ["L_late:"] + poll("L_pollDead", 2, 7, TMP + 4) + wdma([3, 4, 5])
    o += ["s_setprio %d" % {"A": 0, "B": 3, "K": 1}[role], f"s_mov_b32 s{ITER}, 0",
          f"s_mov_b32 s{XK}, {hex((0x80 - 6) * 0x01010101)}", f"v_mov_b32 v{PV}, 9"]
    o += F(-1)
    o += block(role, 0, 0)
    o += block(role, 1, 0, post=flag_read(FV))
    if grp == "L":
        o += ["s_waitcnt vmcnt(0)"] + signal(8, TMP + 4)
    o += stamp("head")
    return o


def mlp_loop(grp, role):
    o = ([f".p2align {OPT['al']}"] if OPT["al"] else []) + ["s_nop 0"] * OPT["shift"] + [f"L_loop{grp}:"]
    o += block(role, 2, 0, pre=recheck(f"L_pollW{grp}", f"s{XK}", FV), post=[f"ds_write_b8 v{FLW}, v{PV}"])
    o += block(role, 3, 0) + block(role, 4, 0) + block(role, 5, 0, post=flag_read(FV))
    o += [f"v_add_u32 v{AW1}, {PAIR}, v{AW1}", f"v_add_u32 v{AW2}, {PAIR}, v{AW2}", f"v_add_u32 v{ABI}, 0x100, v{ABI}",
          f"v_add_u32 v{PV}, 1, v{PV}",
          f"s_sub_u32 s{XK}, s{XK}, 0x01010101", f"s_max_u32 s{XK}, s{XK}, {hex((0x80 - 8) * 0x01010101)}",
          f"s_add_u32 s{ITER}, s{ITER}, 1"]
    for k in range(5):
        st = stamp(f"it{k}")
        if st:
            o += [f"s_cmp_lg_u32 s{ITER}, {k + 1}", f"s_cbranch_scc1 L_st{grp}{k}"] + st + [f"L_st{grp}{k}:"]
    o += [f"s_cmp_lt_u32 s{ITER}, 5", f"s_cbranch_scc1 L_loop{grp}"]
    return o


def mlp_tail(role):
    o = stamp("loop")
    for b in range(22, 26):
        o += block(role, b, 5)
    return o


def epilogue():
    o = ["s_setprio 0"]
    o += stamp("mlp")
    GAM = W2F
    for half in range(2):
        o += [f"ds_read_b128 {vr(GAM + 4 * i, 4)}, v{AGAM} offset:{GAMOFF + 64 * (3 * half + i // 2) + 16 * (i % 2)}"
              for i in range(6)]
        for c3 in range(3):
            ci = 3 * half + c3
            for j in range(4):
                o += [f"v_lshlrev_b32 v{TMP + 8 * c3 + 2 * j}, 16, v{XRES + 4 * ci + j}",
                      f"v_and_b32 v{TMP + 8 * c3 + 2 * j + 1}, 0xffff0000, v{XRES + 4 * ci + j}"]
        o += ["s_waitcnt lgkmcnt(0)"]
        for c3 in range(3):
            ci = 3 * half + c3
            for j in range(8):
                o += [f"v_fmac_f32 v{TMP + 8 * c3 + j}, v{ACC2 + 8 * ci + j}, v{GAM + 8 * c3 + j}"]
            for j in range(4):
                o += [f"v_cvt_pk_bf16_f32 v{BOP + 4 * ci + j}, v{TMP + 8 * c3 + 2 * j}, v{TMP + 8 * c3 + 2 * j + 1}"]
    o += poll("L_pollOut", 11, 11, TMP) + stamp("poll")
    o += [f"v_xor_b32 v{XRA}, 32, v{OW}", f"s_mul_i32 s{SB}, s{WAVE}, 6144", f"v_add_u32 v{WV2}, s{SB}, v{WV2}"]
    for ci in range(6):
        o += [f"ds_write_b128 v{XRA if ci % 2 else OW}, {vr(BOP + 4 * ci, 4)} offset:{64 * (ci // 2)}"]
    o += ["s_waitcnt lgkmcnt(0)"] + stamp("lds", True)
    for k in range(6):
        o += [f"ds_read_b128 {vr(ACC1 + 4 * k, 4)}, v{WV2} offset:{1024 * k}"]
    o += [f"s_add_u32 s{SA}, s{OBASE}, {ROWB}"]
    for k in range(6):
        o += [f"s_waitcnt lgkmcnt({5 - k})",
              f"buffer_store_dwordx4 {vr(ACC1 + 4 * k, 4)}, v{GO + k % 3}, s[{SO}:{SO + 3}], s{OBASE if k < 3 else SA} offen {OPT['snt']}"]
    if OPT["stamps"]:
        o += stamp("issued_st") + ["s_waitcnt vmcnt(0)"] + stamp("end")
        o += ["s_memrealtime s[96:97]", "s_getreg_b32 s98, hwreg(HW_REG_HW_ID)", "s_waitcnt lgkmcnt(0)",
              f"s_lshl_b32 s{SA}, s2, 3", f"s_add_u32 s{SA}, s{SA}, s{WAVE}", f"s_lshl_b32 s{SA}, s{SA}, 6",
              f"v_mov_b32 v1, s{SA}"]
        n = nstamp[0]
        for i in range(n):
            o += [f"v_mov_b32 v{16 + i}, s{STAMP + 2 * i}"]
        o += [f"v_mov_b32 v{16 + i}, 0" for i in range(n, 13)]
        o += ["v_mov_b32 v29, s100", "v_mov_b32 v30, s96", "v_mov_b32 v31, s98"]
        o += [f"global_store_dwordx4 v1, {vr(16 + 4 * i, 4)}, s[20:21] offset:{16 * i}" for i in range(4)]
    return o


def main():
    segs = {}
    segs["setup"] = setup()
    segs["issueL"] = issue_b()
    segs["issueE"] = issue_a()
    segs["addr"] = addresses()
    segs["tabE"] = tables_a()
    segs["loadL"] = load_l()
    segs["frags"] = frags()
    segs["preL"] = pre_b()
    segs["preE"] = pre_a()
    segs["conv"] = conv()
    segs["ln"] = ln_stats() + ln_norm()
    roles = {"E": OPT["roles"][0], "L": OPT["roles"][1]}
    for g in "EL":
        segs["head" + g] = mlp_head(g, roles[g])
        segs["loop" + g] = mlp_loop(g, roles[g])
        segs["tail" + g] = mlp_tail(roles[g])
    segs["tailE"] += ["s_branch L_epi"]
    segs["epi"] = ["L_epi:"] + epilogue()
    traces = {
        "E": ["setup", "issueE", "addr", "tabE", "frags", "preE", "conv", "ln"],
        "L": ["setup", "issueL", "addr", "loadL", "frags", "preL", "conv", "ln"]}
    for g in "EL":
        traces[g] += ["head" + g, "loop" + g, "loop" + g, "tail" + g, "epi"]
    fix(segs, traces, verbose=bool(OPT.get("v")))
    ref = open(f"cdna_kernels/{KN}.s.ref").read().split("\n")
    head = [l for l in ref if l.startswith(";") and "@launch" not in l]
    order = ["setup", "issueL", "issueE", "addr", "tabE", "loadL", "frags", "preL", "preE", "conv", "ln",
             "headE", "loopE", "tailE", "headL", "loopL", "tailL", "epi"]
    out = head + [f"; @launch grid=(200,1,1) block=(512,1,1) lds={LDS_BYTES}",
                  '.amdgcn_target "amdgcn-amd-amdhsa--gfx950"', ".text", f".globl {KN}_kernel", ".p2align 8",
                  f".type {KN}_kernel,@function", f"{KN}_kernel:"]
    for s in order:
        out += [f"; ---- {s}"] + [l if l.endswith(":") or l.startswith(".") else "    " + l.rstrip() for l in segs[s]]
    out += ["L_end:", "    s_endpgm", "L_codeend:",
            '.section .rodata,"a"', ".p2align 6", f".amdhsa_kernel {KN}_kernel",
            "  .amdhsa_next_free_vgpr 256", "  .amdhsa_next_free_sgpr 102", "  .amdhsa_accum_offset 256",
            "  .amdhsa_group_segment_fixed_size 0", "  .amdhsa_kernarg_size 80", "  .amdhsa_user_sgpr_count 2",
            "  .amdhsa_user_sgpr_kernarg_segment_ptr 1", "  .amdhsa_system_sgpr_workgroup_id_x 1",
            ".end_amdhsa_kernel"]
    open(sys.argv[1], "w").write("\n".join(out) + "\n")
    if OPT["stamps"]:
        open(sys.argv[1] + ".stamps", "w").write(" ".join(STAMPS))


if __name__ == "__main__":
    main()
```

```python
import re

TRANS = ("v_exp_f32", "v_rcp_f32", "v_rsq_f32", "v_log_f32", "v_sqrt_f32")


def regs(tok):
    tok = tok.strip().lstrip("-")
    if tok.startswith("abs(") or tok.startswith("|"):
        tok = tok.replace("abs(", "").replace(")", "").replace("|", "")
    m = re.fullmatch(r"([vsa])\[(\d+):(\d+)\]", tok)
    if m:
        return [(m.group(1), i) for i in range(int(m.group(2)), int(m.group(3)) + 1)]
    m = re.fullmatch(r"([vsa])(\d+)", tok)
    if m:
        return [(m.group(1), int(m.group(2)))]
    if tok == "vcc":
        return [("s", "vcc")]
    if tok == "m0":
        return [("s", "m0")]
    if tok == "exec":
        return [("s", "exec")]
    return []


class Ins:
    def __init__(self, text):
        self.text = text
        t = text.split(";")[0].strip()
        parts = t.split(None, 1)
        self.op = parts[0]
        rest = parts[1] if len(parts) > 1 else ""
        ops = [x.strip() for x in rest.split(",")]
        if ops:
            ops[-1] = ops[-1].split(" ")[0] if not ops[-1].startswith("hwreg") else ops[-1]
        self.mods = rest
        op = self.op
        self.kind = "other"
        self.w, self.r = [], []
        self.ab, self.c = [], []
        self.states = 1
        self.passes = 0
        R = [regs(o) for o in ops]
        if op.startswith("v_mfma") or op.startswith("v_smfmac"):
            self.kind = "mfma"
            self.passes = 8 if "32x32" in op else 4
            self.w = R[0]
            if op.startswith("v_smfmac"):
                self.ab = R[1] + R[2] + R[3]
                self.c = R[0]
            else:
                self.ab = R[1] + R[2]
                self.c = R[3]
            self.r = self.ab + self.c
        elif op.startswith("v_"):
            self.kind = "valu"
            base = op.replace("_e32", "").replace("_e64", "")
            self.trans = base in TRANS
            if base.startswith("v_permlane"):
                self.w = R[0] + R[1]
                self.r = R[0] + R[1]
            else:
                self.w = R[0]
                self.r = sum(R[1:], [])
                if base in ("v_fmac_f32",):
                    self.r += R[0]
        elif op.startswith("ds_read"):
            self.kind = "lds"
            self.w = R[0]
            self.r = R[1]
        elif op.startswith("ds_"):
            self.kind = "lds"
            self.r = sum(R, [])
        elif op.startswith("buffer_load") or op.startswith("global_load"):
            self.kind = "vmem"
            if re.search(r"\blds\b", rest):
                self.r = sum(R, []) + [("s", "m0")]
                self.dma = True
            else:
                self.w = R[0]
                self.r = sum(R[1:], [])
        elif op.startswith("buffer_store") or op.startswith("global_store"):
            self.kind = "vmem"
            self.r = sum(R, [])
            self.store = R[0] if op.startswith("buffer") else R[1]
        elif op == "s_nop":
            self.states = int(ops[0]) + 1
        elif op == "s_waitcnt":
            self.kind = "wait"
        elif op.startswith("s_load") or op.startswith("s_memtime") or op.startswith("s_memrealtime"):
            self.kind = "smem"
            self.w = R[0]
            self.r = sum(R[1:], [])
        elif op.startswith("s_cmp") or op.startswith("s_bitcmp") or op.startswith("s_cbranch") or op in (
                "s_branch", "s_barrier", "s_setprio", "s_endpgm", "s_sleep"):
            self.kind = "salu"
            self.r = sum(R, [])
        elif op.startswith("s_"):
            self.kind = "salu"
            self.w = R[0]
            self.r = sum(R[1:], [])


def is_ins(l):
    l = l.strip()
    return bool(l) and not l.startswith((";", ".")) and not l.endswith(":")


def check(lines, name=""):
    idx = [n for n, l in enumerate(lines) if is_ins(l)]
    ins = [Ins(lines[n]) for n in idx]
    errs = []
    short = []
    pos = []
    p = 0
    for i in ins:
        pos.append(p)
        p += i.states
    lgkm, vm = [], []
    for j, b in enumerate(ins):
        def dist(k):
            return pos[j] - pos[k] - ins[k].states

        def err(k, need, why):
            short.append((idx[j], need - dist(k), f"{name}: {why}: need {need} have {dist(k)}: {ins[k].text} -> {b.text}"))
        rb, wb = set(b.r), set(b.w)
        for k in range(j - 1, max(-1, j - 24), -1):
            a = ins[k]
            d = dist(k)
            if d >= 20:
                break
            wa = set(a.w)
            if a.kind == "valu":
                vw = {x for x in wa if x[0] != "s"}
                sw = {x for x in wa if x[0] == "s"}
                if b.kind == "mfma" and vw & rb and d < 2:
                    err(k, 2, "valu->mfma")
                if b.kind == "valu" and a.trans and not b.trans and vw & rb and d < 1:
                    err(k, 1, "trans->valu")
                if a.op.startswith("v_dot") and b.op != a.op and vw & (rb | wb) and d < 3:
                    err(k, 3, "dot->other")
                if b.op.startswith("v_permlane") and vw & rb and d < 2:
                    err(k, 2, "valu->permlane")
                if b.op.startswith(("v_readfirstlane", "v_readlane")) and vw & rb and d < 1:
                    err(k, 1, "valu->readlane")
                if "dpp" in b.op and vw & rb and d < 2:
                    err(k, 2, "valu->dpp")
                if b.kind == "valu" and sw & rb and d < 2:
                    err(k, 2, "valu sgpr->valu")
                if b.kind == "vmem" and sw & rb and d < 5:
                    err(k, 5, "valu sgpr->vmem")
                if b.kind == "salu" and sw & rb and d < 1:
                    err(k, 1, "valu sgpr->salu")
            if a.kind == "mfma":
                n = {8: 12, 4: 8}[a.passes]
                if b.kind in ("valu", "lds", "vmem") and wa & (rb | wb) and d < n:
                    err(k, n, "mfma D->use")
                if b.kind == "mfma":
                    if wa & set(b.ab) and d < n:
                        err(k, n, "mfma D->AB")
                    if wa & set(b.c) and not (a.w == b.c and a.passes == b.passes) and d < n - 2:
                        err(k, n - 2, "mfma D->C partial")
                    if wa & wb and not (wa & set(b.c)) and d < n - 2:
                        err(k, n - 2, "mfma D->D waw")
                m = {8: 7, 4: 3}[a.passes]
                if b.kind == "valu" and set(a.c) & wb and d < m:
                    err(k, m, "mfma C war")
            if a.kind == "salu" and ("s", "m0") in wa and getattr(b, "dma", False) and d < 1:
                err(k, 1, "m0->dma")
            if a.kind == "vmem" and getattr(a, "store", None) and len(a.store) >= 3 and set(a.store) & wb and d < 2:
                err(k, 2, "store data war")
        touched = rb | wb
        for q, nm in ((lgkm, "lgkm"), (vm, "vm")):
            for k in q:
                if set(ins[k].w) & touched:
                    errs.append(f"{name}: pending {nm} result touched\n    {ins[k].text}\n    {b.text}")
        if b.kind == "wait":
            m = re.search(r"lgkmcnt\((\d+)\)", b.text)
            if m:
                n = int(m.group(1))
                if n > 0 and any(ins[k].kind == "smem" for k in lgkm):
                    errs.append(f"{name}: counted lgkmcnt with smem outstanding: {b.text}")
                del lgkm[:max(0, len(lgkm) - n)]
            m = re.search(r"vmcnt\((\d+)\)", b.text)
            if m:
                n = int(m.group(1))
                del vm[:max(0, len(vm) - n)]
        elif b.kind in ("lds", "smem"):
            lgkm.append(j)
        elif b.kind == "vmem":
            vm.append(j)
    return errs, short


def fix(segs, traces, verbose=False, lax=False):
    added = 0
    while True:
        changed = False
        for tname, tr, skip in [(k, v, sk) for k, v in traces.items() for sk in (False, True)]:
            lines, back = [], []
            for sname in tr:
                until = None
                for n, l in enumerate(segs[sname]):
                    if until is not None:
                        if l.strip() != until:
                            continue
                        until = None
                    lines.append(l)
                    back.append((sname, n))
                    m = re.match(r"s_cbranch_\w+ (\w+)", l.strip())
                    if skip and m and m.group(1) + ":" in [x.strip() for x in segs[sname][n + 1:]]:
                        until = m.group(1) + ":"
            errs, short = check(lines, tname)
            if errs and not lax:
                raise RuntimeError("\n".join(errs[:20]))
            if short:
                j = short[0][0]
                need = max(d for jj, d, _ in short if jj == j)
                if verbose:
                    print("nop", need, short[0][2])
                sname, n = back[j]
                segs[sname].insert(n, f"s_nop {need - 1}")
                added += 1
                changed = True
                break
        if not changed:
            return added
```

```python
import math
import struct
import sys

from hazard import fix

KN = "standalone__modern_conv_block_convnext__vision"
OPT = dict(xnt="nt", snt="sc1", stamps=0, pf=1, roles="AB", set="all", al=0, shift=0, pairw=5, up=16, w0first=1, eprio=1, dwprio=3)
for a in sys.argv[2:]:
    k, v = a.split("=")
    OPT[k] = int(v) if v.lstrip("-").isdigit() else v


def f32(x):
    return "0x%08x" % struct.unpack("<I", struct.pack("<f", x))[0]


LOG2E = 1.4426950408889634
K1 = 2.0 * math.sqrt(2.0 / math.pi)
BETA = -((LOG2E * K1 * 0.044715) ** (1.0 / 3.0))
CGELU = LOG2E * K1 / -BETA

PAIR = 24576
XIMG = 3 * PAIR
DWT = XIMG + 76800
TAB = DWT + 8192
FL = TAB + 4096
LDS_BYTES = FL + 64
B2OFF, GAMOFF = 2048, 3072
XB = 224 * 224 * 192
ROWB = 224 * 192
BIG = 0x20000000

LANE, XV, WV1, IDX, AW1, AW2, ABI, XRA, OW, WV2, GO, AGAM, FLW, FLR = 0, 1, 2, 3, 4, 5, 6, 7, 8, 9, 10, 13, 14, 15
CACC, AF, BB, CP, EXW, EXR, FLG, DVAL, DHOT = 16, 64, 124, 244, 247, 248, 249, 250, 251
ACC2, ACC1, BOP, W1F, W2F, GR, TR, BIAS, XRES, TMP = 16, 64, 96, 120, 144, 168, 176, 192, 208, 232
SX, SDW, SW1, SW2, ST, SO = 24, 28, 32, 36, 16, 40
P_B1, P_B2, P_GA = 4, 6, 8
WAVE, KQ, TY, TX, SROW, SM0, SA, SB, SC, OBASE, ONES, XK, WG1, WM0, ITER, SCALE = range(48, 64)
KTOP = 10
STAMP = 64
nstamp = [0]


def stamp(name, drain=False, same=False):
    if not OPT["stamps"] or name not in STAMPSETS[OPT["set"]]:
        return []
    same = name in STAMPS
    if drain and OPT["set"] != "cv":
        return stamp(name) + ["s_waitcnt lgkmcnt(0)"]
    if same:
        n = STAMPS.index(name)
    else:
        n = nstamp[0]
        nstamp[0] += 1
        STAMPS.append(name)
    ins = "s_memrealtime" if OPT["stamps"] == 2 else "s_memtime"
    return [f"{ins} s[{STAMP + 2 * n}:{STAMP + 2 * n + 1}]"]


STAMPS = []
STAMPSETS = {
    "all": "start karg issued dw frags x conv ln mlp issued_st end".split(),
    "pro": "start karg issued addr landed tab dw frags x conv stats ln end".split(),
    "cv": "start x c0 c1 c2 conv sig stats l0 l1 l2 ln end".split(),
    "m2": "start x conv ln head loop mlp poll lds issued_st end".split(),
    "mlp": "start ln head it0 it1 it2 it3 it4 mlp poll lds issued_st end".split(),
}


def vr(b, n):
    return f"v[{b}:{b + n - 1}]"


def srd(base, size):
    return [f"s_mov_b32 s{base + 2}, {size}", f"s_mov_b32 s{base + 3}, 0x20000"]


def poll(name, ka=None, kb=None, tmp=None, addr=FLR):
    def chk(reg, k):
        k = k if isinstance(k, str) else hex((0x80 - k) * 0x01010101)
        return [f"v_readfirstlane_b32 s{SA}, v{reg}", f"s_add_u32 s{SA}, s{SA}, {k}",
                f"s_andn2_b32 s{SA}, 0x80808080, s{SA}", f"s_cbranch_scc1 {name}"]
    if ka is not None and kb is not None:
        return [f"{name}:", f"ds_read_b64 {vr(tmp, 2)}, v{FLR}", "s_waitcnt lgkmcnt(0)"] + chk(tmp, ka) + chk(tmp + 1, kb)
    off = 0 if kb is None else 4
    return [f"{name}:", f"ds_read_b32 v{tmp}, v{addr} offset:{off}", "s_waitcnt lgkmcnt(0)"] + chk(tmp, kb if off else ka)


def recheck(name, k, tmp, late=True, addr=FLR):
    kk = k if isinstance(k, str) else hex((0x80 - k) * 0x01010101)
    return [f"v_readfirstlane_b32 s{SA}, v{tmp}", f"s_add_u32 s{SA}, s{SA}, {kk}",
            f"s_andn2_b32 s{SA}, 0x80808080, s{SA}", f"s_cbranch_scc0 {name}_ok"] + (
                poll(name, None, k, tmp) if late else poll(name, k, None, tmp, addr)) + [f"{name}_ok:"]


def flag_read(tmp, late=True):
    return [f"ds_read_b32 v{tmp}, v{FLR} offset:{4 if late else 0}"]


def signal(stage, tmp):
    return [f"v_mov_b32 v{tmp}, {stage}", f"ds_write_b8 v{FLW}, v{tmp}"]


def kflag(k):
    return hex((0x80 - k) * 0x01010101)


def setup():
    o = stamp("start")
    o += [f"s_load_dwordx2 s[{SX}:{SX + 1}], s[0:1], 0",
          f"v_readfirstlane_b32 s{WAVE}, v0",
          f"s_and_b32 s{SA}, s2, 7", f"s_lshr_b32 s{SB}, s2, 3", f"s_mul_i32 s{SA}, s{SA}, 25",
          f"s_cmp_ge_u32 s{SB}, 25", "s_cbranch_scc1 L_end",
          f"s_add_u32 s{SA}, s{SA}, s{SB}",
          f"s_cmp_ge_u32 s{SA}, 196", "s_cbranch_scc1 L_end",
          f"s_lshr_b32 s{WAVE}, s{WAVE}, 6",
          f"v_and_b32 v{LANE}, 63, v0",
          f"s_mul_hi_u32 s{TY}, s{SA}, 0x12492493",
          f"s_and_b32 s{KQ}, s{WAVE}, 3",
          f"s_mul_i32 s{SB}, s{TY}, 14", f"s_sub_u32 s{TX}, s{SA}, s{SB}",
          f"s_cmp_lt_u32 s{WAVE}, 4", "s_cbranch_scc0 L_issueL"]
    return o


def more_args():
    o = [f"s_load_dwordx2 s[{SW1}:{SW1 + 1}], s[0:1], 16",
         f"s_load_dwordx2 s[{SW2}:{SW2 + 1}], s[0:1], 32",
         f"s_load_dwordx2 s[{SO}:{SO + 1}], s[0:1], 56"]
    if OPT["stamps"]:
        o += ["s_load_dwordx2 s[20:21], s[0:1], 72", "s_memrealtime s[100:101]"]
    return o


def flag_reset():
    return [f"v_mov_b32 v{FLR}, {FL}", f"v_mov_b32 v{IDX}, 0", f"v_add_u32 v{FLW}, s{WAVE}, v{FLR}",
            f"ds_write_b8 v{FLW}, v{IDX}"]


def xrow(r):
    return [f"s_add_u32 m0, s{SM0}, {3840 * r}", f"s_add_u32 s{SA}, s{SROW}, {ROWB * r}",
            f"buffer_load_dwordx4 v{XV}, s[{SX}:{SX + 3}], s{SA} offen {OPT['xnt']} lds"]


AP, MASK, TABV, PFV, SETT, PP = BB, BB + 4, BB + 8, BB + 16, BB + 18, BB + 32


def xaddr_dma():
    a, b, c = SETT, SETT + 1, SETT + 2
    o = [f"v_mul_u32_u24 v{a}, 43, v{LANE}", f"s_mul_i32 s{SB}, s{KQ}, 5", f"v_lshrrev_b32 v{a}, 9, v{a}",
         f"v_mul_u32_u24 v{b}, 12, v{a}", f"v_add_u32 v{a}, s{SB}, v{a}", f"v_sub_u32 v{b}, v{LANE}, v{b}",
         f"s_lshl_b32 s{SB}, s{TX}, 4", f"v_bfe_u32 v{c}, v{a}, 2, 2", f"s_sub_u32 s{SB}, s{SB}, 2",
         f"v_xor_b32 v{b}, v{b}, v{c}", f"v_add_u32 v{a}, s{SB}, v{a}",
         f"v_min_u32 v{a}, 0xe0, v{a}", f"v_add_u32 v{c}, 32, v{a}", f"v_lshrrev_b32 v{c}, 8, v{c}",
         f"v_mul_u32_u24 v{a}, 0xc0, v{a}", f"v_lshl_add_u32 v{a}, v{b}, 4, v{a}",
         f"v_lshl_add_u32 v{XV}, v{c}, 29, v{a}",
         f"s_mul_i32 s{SROW}, s{TY}, {16 * ROWB}", f"s_sub_u32 s{SROW}, s{SROW}, {2 * ROWB}",
         f"s_mul_i32 s{SM0}, s{KQ}, 960", f"s_add_u32 s{SM0}, s{SM0}, {XIMG}"]
    return o + srd(SX, XB)


M60, MFULL = ["s_bfm_b64 exec, 60, 0"], ["s_mov_b64 exec, -1"]


def issue_e():
    a, b = SETT + 3, SETT + 4
    o = ["s_setprio 3", f"s_load_dwordx2 s[{SDW}:{SDW + 1}], s[0:1], 8",
         f"v_lshlrev_b32 v{WV2}, 4, v{LANE}",
         f"s_lshl_b32 s{SB}, s{KQ}, 11", f"s_sub_u32 s{SC}, s{SB}, 960", f"v_add_u32 v{a}, s{SC}, v{WV2}",
         f"v_add_u32 v{b}, 0x400, v{a}", f"s_add_u32 m0, s{SB}, {DWT}"] + srd(SDW, 4800) + xaddr_dma()
    o += [f"s_cmp_eq_u32 s{TY}, 0", f"s_cselect_b32 s{SB}, {BIG}, s{SROW}", "s_waitcnt lgkmcnt(0)"] + stamp("karg")
    o += [f"buffer_load_dwordx4 v{a}, s[{SDW}:{SDW + 3}], 0 offen lds",
          f"s_add_u32 m0, m0, 0x400",
          f"s_load_dwordx2 s[{P_B1}:{P_B1 + 1}], s[0:1], 24",
          f"buffer_load_dwordx4 v{b}, s[{SDW}:{SDW + 3}], 0 offen lds",
          f"s_mov_b32 m0, s{SM0}"] + M60
    o += [f"buffer_load_dwordx4 v{XV}, s[{SX}:{SX + 3}], s{SB} offen {OPT['xnt']} lds",
          f"s_add_u32 m0, s{SM0}, 3840", f"s_add_u32 s{SB}, s{SB}, {ROWB}",
          f"buffer_load_dwordx4 v{XV}, s[{SX}:{SX + 3}], s{SB} offen {OPT['xnt']} lds",
          f"s_load_dwordx2 s[{P_B2}:{P_B2 + 1}], s[0:1], 40",
          f"s_load_dwordx2 s[{P_GA}:{P_GA + 1}], s[0:1], 48"] + more_args()
    for r in range(2, 12):
        o += xrow(r)
    o += MFULL + flag_reset()
    o += [f"s_mov_b32 s{ST + 3}, 0x20000",
          f"s_cmp_lt_u32 s{KQ}, 2", f"s_movk_i32 s{ST + 2}, 192", f"s_cmov_b32 s{ST + 2}, 768",
          f"s_cselect_b32 s{SC}, s{KQ}, 0", f"s_lshl_b32 s{SC}, s{SC}, 9",
          f"v_lshl_add_u32 v{TABV + 2}, v{LANE}, 3, s{SC}", "s_waitcnt lgkmcnt(0)",
          f"s_cmp_eq_u32 s{KQ}, 2", f"s_cselect_b64 s[{ST}:{ST + 1}], s[{P_B2}:{P_B2 + 1}], s[{P_B1}:{P_B1 + 1}]",
          f"s_cmp_eq_u32 s{KQ}, 3", f"s_cselect_b64 s[{ST}:{ST + 1}], s[{P_GA}:{P_GA + 1}], s[{ST}:{ST + 1}]",
          f"s_mov_b32 s{SCALE}, {f32(BETA)}", f"s_cmov_b32 s{SCALE}, {f32(1.0 / BETA)}",
          f"buffer_load_dwordx2 {vr(TABV, 2)}, v{TABV + 2}, s[{ST}:{ST + 3}], 0 offen",
          f"s_mov_b32 s{KTOP}, {kflag(0)}", f"v_mov_b32 v{FLG}, v{FLR}", f"v_add_u32 v{EXR}, {2 * PAIR}, v{WV2}"]
    return o


def issue_l():
    o = ["L_issueL:"] + more_args() + [f"v_lshlrev_b32 v{WV2}, 4, v{LANE}"] + flag_reset() + xaddr_dma()
    o += [f"s_mov_b32 s{KTOP}, {kflag(4)}", f"v_add_u32 v{FLG}, 4, v{FLR}",
          f"v_add_u32 v{EXR}, {XIMG}, v{WV2}"] + stamp("karg") + ["s_branch L_addr"]
    return o


def wdma(pairs):
    o = []
    for p in pairs:
        for i in range(3):
            o += [f"s_add_u32 m0, s{WM0}, {PAIR * p + 1024 * i}", f"s_add_u32 s{SA}, s{WG1}, {128 * p + 6144 * i}",
                  f"buffer_load_dwordx4 v{WV1}, s[{SW1}:{SW1 + 3}], s{SA} offen lds"]
        o += [f"s_add_u32 m0, s{WM0}, {PAIR * p + 12288}", f"s_add_u32 s{SA}, s{WM0}, {12288 * p}"]
        o += [f"buffer_load_dwordx4 v{WV2}, s[{SW2}:{SW2 + 3}], s{SA} offen offset:{1024 * i} lds" for i in range(3)]
    return o


def addresses():
    o = ["L_addr:"]
    o += stamp("issued")
    n, g, hf, s, rho, c, t, u, w = (SETT + 5 + i for i in range(9))
    o += [f"v_and_b32 v{n}, 15, v{LANE}", f"v_lshrrev_b32 v{g}, 4, v{LANE}", f"v_lshrrev_b32 v{hf}, 5, v{LANE}",
          f"v_and_b32 v{s}, 1, v{g}", f"v_bfe_u32 v{rho}, v{LANE}, 2, 2", f"v_and_b32 v{c}, 3, v{LANE}"]
    o += [f"v_bfe_u32 v{t}, v{LANE}, 2, 3", f"v_mul_u32_u24 v{t}, 0x300, v{t}",
          f"v_lshl_add_u32 v{t}, v{hf}, 6, v{t}", f"v_lshl_add_u32 v{WV1}, v{c}, 4, v{t}",
          f"s_mul_i32 s{WM0}, s{KQ}, 3072", f"s_mul_i32 s{WG1}, s{KQ}, 18432"]
    o += srd(SW1, 73728) + srd(SW2, 73728) + srd(SO, XB)
    o += [f"v_mul_u32_u24 v{IDX}, 0x5555, v{c}"]
    o += [f"s_lshl_b32 s{SA}, s{KQ}, 4", f"s_add_u32 s{SA}, s{SA}, {DWT + 960}",
          f"v_and_b32 v{t}, 2, v{c}", f"v_and_b32 v{u}, 1, v{c}", f"v_mul_u32_u24 v{u}, 960, v{u}",
          f"v_lshlrev_b32 v{t}, 2, v{t}", f"v_lshl_add_u32 v{t}, v{rho}, 6, v{t}",
          f"v_sub_u32 v{t}, v{t}, v{u}", f"v_add_u32 v{t}, s{SA}, v{t}",
          f"v_lshlrev_b32 v{w}, 3, v{g}", f"s_movk_i32 s{SB}, 0xc0"]
    for q, tab in enumerate([[0, 2, 1, 3], [4, 14, 24, 30], [30, 4, 14, 24]]):
        cst = sum(v << (8 * i) for i, v in enumerate(tab))
        o += [f"s_mov_b32 s{SA}, {cst}", f"v_bfe_u32 v{AP + q}, s{SA}, v{w}, 8",
              f"v_mad_u32_u24 v{AP + q}, v{AP + q}, s{SB}, v{t}"]
    o += [f"v_bfe_i32 v{t}, v{LANE}, 3, 1", f"v_lshrrev_b32 v{MASK + 2}, 16, v{t}",
          f"v_and_b32 v{MASK + 3}, 0xffff0000, v{t}", f"v_xor_b32 v{MASK}, 0xffff, v{MASK + 2}",
          f"v_xor_b32 v{MASK + 1}, 0xffff0000, v{MASK + 3}"]

    def xaddr(dst, col, row, extra):
        return [f"v_bfe_u32 v{t}, v{col}, 2, 2", f"v_xor_b32 v{t}, {extra}, v{t}",
                f"v_mul_u32_u24 v{u}, 0xc0, v{col}", f"v_lshl_add_u32 v{t}, v{t}, 4, v{u}",
                f"v_mul_u32_u24 v{u}, 0xf00, v{row}", f"v_add3_u32 v{dst}, v{t}, v{u}, s{SB}"]
    o += [f"s_lshr_b32 s{SB}, s{WAVE}, 2", f"s_mul_i32 s{SB}, s{SB}, 30720", f"s_add_u32 s{SB}, s{SB}, {XIMG}"]
    o += [f"v_lshl_add_u32 v{w}, v{hf}, 1, v{n}"] + xaddr(CP, w, s, f"s{KQ}")
    o += [f"v_add_u32 v{w}, 1, v{w}"] + xaddr(CP + 1, w, s, f"s{KQ}")
    o += [f"v_add_u32 v{w}, 4, v{n}"] + xaddr(CP + 2, w, g, f"s{KQ}")
    o += [f"s_mul_i32 s{SB}, s{WAVE}, 7680", f"s_add_u32 s{SB}, s{SB}, {XIMG + 7680}",
          f"v_add_u32 v{w}, 2, v{n}"] + xaddr(XRA, w, s, f"v{hf}")
    o += [f"s_and_b32 s{SA}, s{KQ}, 1", f"s_lshl_b32 s{SA}, s{SA}, 3", f"s_lshr_b32 s{SB}, s{KQ}, 1",
          f"s_lshl_b32 s{SB}, s{SB}, 10", f"s_add_u32 s{SA}, s{SA}, s{SB}", f"v_add_u32 v{EXW}, s{SA}, v{EXR}",
          f"s_mul_i32 s{SA}, s{KQ}, 6144", f"v_add_u32 v{EXR}, s{SA}, v{EXR}"]
    o += [f"v_and_b32 v{t}, 1, v{c}", f"v_lshlrev_b32 v{t}, 4, v{t}", f"s_movk_i32 s{SA}, 0x42c0",
          f"v_lshlrev_b32_e64 v{DVAL}, v{t}, s{SA}",
          f"v_xor_b32 v{t}, v{rho}, v{hf}", f"v_and_b32 v{t}, 1, v{t}", f"v_xor_b32 v{t}, 1, v{t}",
          f"v_bfe_u32 v{u}, v{LANE}, 3, 2", f"v_lshrrev_b32 v{w}, 1, v{c}", f"v_lshl_add_u32 v{u}, v{u}, 1, v{w}",
          f"v_lshlrev_b32 v{DHOT}, v{u}, v{t}"]
    o += [f"v_lshl_add_u32 v{t}, v{hf}, 2, v{rho}", f"v_lshlrev_b32 v{u}, 5, v{s}",
          f"v_lshl_add_u32 v{w}, v{c}, 3, v{u}", f"v_lshl_add_u32 v{AW1}, v{t}, 6, v{w}",
          f"v_mul_u32_u24 v{t}, 0xc0, v{t}", f"v_and_b32 v{w}, 1, v{c}", f"v_lshl_add_u32 v{u}, v{w}, 4, v{u}",
          f"v_lshrrev_b32 v{w}, 1, v{c}", f"v_lshl_add_u32 v{u}, v{w}, 3, v{u}", f"v_add_u32 v{AW2}, v{t}, v{u}",
          f"v_lshlrev_b32 v{t}, 4, v{hf}", f"v_add_u32 v{ABI}, {TAB}, v{t}",
          f"v_add_u32 v{AGAM}, v{ABI}, v{t}"]
    o += [f"s_mul_i32 s{SB}, s{WAVE}, 6144",
          f"v_bfe_u32 v{t}, v{n}, 1, 2", f"v_xor_b32 v{t}, v{t}, v{hf}", f"v_and_b32 v{u}, 31, v{LANE}",
          f"v_mul_u32_u24 v{u}, 0xc0, v{u}", f"v_lshl_add_u32 v{t}, v{t}, 4, v{u}", f"v_add_u32 v{OW}, s{SB}, v{t}"]
    for k in range(3):
        o += [f"v_add_u32 v{t}, {64 * k}, v{LANE}", f"v_mul_u32_u24 v{u}, 171, v{t}",
              f"v_bfe_u32 v{u}, v{u}, 12, 2", f"v_xor_b32 v{t}, v{t}, v{u}", f"v_lshlrev_b32 v{GO + k}, 4, v{t}"]
    o += [f"s_lshl_b32 s{SA}, s{TY}, 4", f"s_lshl_b32 s{SB}, s{WAVE}, 1", f"s_add_u32 s{SA}, s{SA}, s{SB}",
          f"s_mul_i32 s{SA}, s{SA}, {ROWB}", f"s_mul_i32 s{SB}, s{TX}, 3072", f"s_add_u32 s{OBASE}, s{SA}, s{SB}",
          ]
    o += [f"v_mov_b32 v{CACC + i}, 0" for i in range(48)]
    o += stamp("addr")
    o += [f"s_cmp_lt_u32 s{WAVE}, 4", "s_cbranch_scc0 L_loadL"]
    return o


def af(a, f):
    return AF + 20 * a + 4 * f


def frags(grp):
    o = ["s_waitcnt vmcnt(13)"] if grp == "E" else ["L_loadL:"]
    o += ["s_waitcnt lgkmcnt(0)", "s_barrier"] + stamp("dw", True)
    for f in range(5):
        for pp in range(2):
            o += [f"ds_read_b64_tr_b16 {vr(PP + 4 * f + 2 * pp, 2)}, v{AP + max(f - 2, 0)} "
                  f"offset:{960 * pp + (1920 * f if f < 3 else 0)}"]
    if grp == "L":
        o += M60
        for r in range(12, 20):
            o += xrow(r)
        o += MFULL
    for f in range(5):
        o += [f"s_waitcnt lgkmcnt({8 - 2 * f})"]
        for pp in range(2):
            for a in range(3):
                for g in range(2):
                    o += [f"v_and_b32 v{af(a, f) + 2 * pp + g}, v{PP + 4 * f + 2 * pp + a // 2}, v{MASK + 2 * g + a % 2}"]
    o += stamp("frags")
    return o


def pre_l():
    o = wdma([1])
    if OPT["pf"]:
        o += ["s_cmp_ge_u32 s2, 8", "s_cbranch_scc1 L_nopf",
              "s_getpc_b64 s[14:15]", "L_pc:", f"s_lshl_b32 s{SB}, s{KQ}, 13",
              f"v_lshl_add_u32 v{SETT}, v{LANE}, 7, s{SB}",
              f"v_min_u32 v{SETT}, L_codeend-L_conv-4, v{SETT}", "s_sub_u32 s14, s14, L_pc-L_conv",
              "s_subb_u32 s15, s15, 0", f"global_load_dword v{PFV}, v{SETT}, s[14:15]",
              "s_waitcnt vmcnt(0)", "L_nopf:"]
    o += ["s_waitcnt vmcnt(6)", "s_setprio 3"] + signal(2, SETT + 1) + stamp("tab")
    return o + poll("L_pollRows", 2, 2, SETT + 2) + ["s_setprio 1", "s_branch L_conv"]


def pre_e():
    a = TABV
    o = [f"s_lshl_b32 s{SA}, s{KQ}, 10", f"s_add_u32 s{SA}, s{SA}, {TAB}", f"v_add_u32 v{a + 2}, s{SA}, v{WV2}",
         "s_waitcnt vmcnt(0)"] + signal(2, SETT) + stamp("tab") + wdma([0])
    o += [f"v_lshlrev_b32 v{a + 4}, 16, v{a}", f"v_and_b32 v{a + 5}, 0xffff0000, v{a}",
          f"v_lshlrev_b32 v{a + 6}, 16, v{a + 1}", f"v_and_b32 v{a + 7}, 0xffff0000, v{a + 1}"]
    o += [f"v_mul_f32 v{a + 4 + i}, s{SCALE}, v{a + 4 + i}" for i in range(4)]
    o += [f"ds_write_b128 v{a + 2}, {vr(a + 4, 4)}"]
    return o + poll("L_pollX", 2, None, SETT + 1)


FV, PV = LANE, IDX


class LdsQueue:
    def __init__(self):
        self.n = 0
        self.done = 0

    def issue(self, lines):
        self.n += sum(l.startswith("ds_") for l in lines)
        return lines

    def wait(self, upto):
        if upto <= self.done:
            return []
        self.done = upto
        assert self.n - upto <= 15
        return [f"s_waitcnt lgkmcnt({self.n - upto})"]


DG, NEG, SUMD = AF + 8, AF + 16, TR


def cacc(a, t):
    return CACC + 16 * a + 4 * t


def conv():
    o = ["L_conv:"] + stamp("x", True)
    q = LdsQueue()
    mark = {}

    def reads(a, u):
        b = BB + 60 * (a % 2)
        if u < 6:
            r = [f"ds_read_b128 {vr(b + 8 * u + 4 * h, 4)}, v{CP + h} offset:{7680 * u + 64 * a}" for h in range(2)]
        else:
            r = [f"ds_read_b128 {vr(b + 48 + 4 * j, 4)}, v{CP + 2} offset:{15360 * j + 64 * a}"
                 for j in ((0, 1) if u == 6 else (2,))]
        q.issue(r)
        mark[a, u] = q.n
        return r

    def pack(a):
        return [f"v_cvt_pk_bf16_f32 v{af(a, 0) + 2 * t + i}, v{cacc(a, t) + 2 * i}, v{cacc(a, t) + 2 * i + 1}"
                for t in range(4) for i in range(2)]

    def sm(a, t, f, b):
        return f"v_smfmac_f32_16x16x64_bf16 {vr(cacc(a, t), 4)}, {vr(af(a, f), 4)}, {vr(b, 8)}, v{IDX}"

    def put(a, t):
        return [f"ds_write_b64 v{EXW}, {vr(af(a, 0) + 2 * t, 2)} offset:{6144 * t + 2048 * a}"]
    xres = [f"ds_read_b128 {vr(XRES + 8 * a, 4)}, v{XRA} offset:{64 * a}" for a in range(3)]
    xres += [f"v_xor_b32 v{XRA}, 32, v{XRA}"]
    xres += [f"ds_read_b128 {vr(XRES + 8 * a + 4, 4)}, v{XRA} offset:{64 * a}" for a in range(3)]
    for u in range(8):
        o += reads(0, u)
    for a in range(3):
        b = BB + 60 * (a % 2)
        pk = pack(a - 1) if a else []
        for u in range(8):
            o += q.wait(mark[a, u])
            if u == 0:
                o += stamp(f"c{a}")
            if a == 1 and u == 0:
                o += q.issue(flag_read(FV, False))
            if a < 2:
                o += reads(a + 1, u)
            else:
                if u == 0:
                    o += recheck("L_pollTop", f"s{KTOP}", FV, False)
                o += q.issue((xres[u:u + 1] if u < 3 else xres[3:5] if u == 3 else xres[u + 1:u + 2]) + put(u // 4, u % 4))
            if u < 6:
                ms = [sm(a, t, u - t, b + 8 * u) for t in range(4) if 0 <= u - t <= 2]
            else:
                ms = [sm(a, t, 3 + t % 2, b + 48 + 4 * (t // 2)) for t in ((0, 1) if u == 6 else (2, 3))]
            for m in ms:
                o += [m]
                if u >= 1:
                    o += pk[:1]
                    pk = pk[1:]
    o += ["s_setprio 3", f"v_mov_b32 v{TMP + 2}, 4"] + stamp("conv", True)
    pk = pack(2)
    for t in range(4):
        o += pk[2 * t:2 * t + 2] + put(2, t)
    o += ["s_waitcnt vmcnt(0)", f"ds_write_b8 v{FLW}, v{TMP + 2}"]
    o += stamp("sig")
    o += [f"v_bfe_i32 v{DG + i}, v{DHOT}, {i}, 1" for i in range(8)]
    o += [f"v_and_b32 v{DG + i}, v{DG + i}, v{DVAL}" for i in range(8)]
    o += [f"v_mov_b32 v{NEG + i}, 0xbf80bf80" for i in range(4)]
    o += [f"v_mov_b32 v{GR + 4 + i}, 0" for i in range(4)]
    o += [f"v_mov_b32 v{TMP + 3}, 5", f"v_mov_b32 v{TMP + 1}, {f32(1e-5)}"]
    o += poll("L_pollEx", 4, None, TMP + 4, FLG) + stamp("stats", True)
    return o


def layernorm():
    q = [TMP + 6, TMP + 7]
    d = D(-1, 0)
    o = [f"ds_read_b128 {vr(BOP + 4 * kk, 4)}, v{EXR} offset:{1024 * kk}" for kk in range(6)] + d[:8]
    for kk in range(6):
        o += [f"s_waitcnt lgkmcnt({13 - kk})",
              f"v_mfma_f32_32x32x16_bf16 {vr(SUMD, 16)}, {vr(NEG, 4)}, {vr(BOP + 4 * kk, 4)}, {vr(SUMD, 16) if kk else 0}"]
    o += [f"ds_write_b8 v{FLW}, v{TMP + 3}"] + stamp("l0")
    sq = [f"v_mul_f32 v{q[j]}, v{CACC + j}, v{CACC + j}" for j in range(2)]
    sq += [f"v_fmac_f32 v{q[j % 2]}, v{CACC + j}, v{CACC + j}" for j in range(2, 48)]
    o += [mf(CACC, DG, BOP, SUMD)] + d[8:12] + [mf(CACC, DG + 4, BOP + 4, CACC)] + d[12:]
    o += [mf(CACC + 16, DG, BOP + 8, SUMD), mf(CACC + 16, DG + 4, BOP + 12, CACC + 16)]
    o += [mf(CACC + 32, DG, BOP + 16, SUMD)] + sq[:6] + [mf(CACC + 32, DG + 4, BOP + 20, CACC + 32)] + sq[6:]
    o += stamp("l1")
    o += [f"v_add_f32 v{q[0]}, v{q[0]}, v{q[1]}", f"v_mov_b32 v{q[1]}, v{q[0]}",
          f"v_permlane32_swap_b32 v{q[0]}, v{q[1]}", f"v_add_f32 v{q[0]}, v{q[0]}, v{q[1]}",
          f"v_fmamk_f32 v{q[0]}, v{q[0]}, {f32(1 / 96 ** 3)}, v{TMP + 1}", f"v_rsq_f32 v{TMP}, v{q[0]}",
          "s_waitcnt lgkmcnt(0)", f"v_mul_f32 v{TMP}, {f32(BETA / 96)}, v{TMP}"] + stamp("l2")
    for kk in range(6):
        o += [f"v_mul_f32 v{CACC + 8 * kk + j}, v{CACC + 8 * kk + j}, v{TMP}" for j in range(8)]
        if kk:
            o += [mf(ACC1, W1F + 4 * (kk - 1), BOP + 4 * (kk - 1), BIAS if kk == 1 else ACC1)]
        o += [f"v_cvt_pk_bf16_f32 v{BOP + 4 * kk + i}, v{CACC + 8 * kk + 2 * i}, v{CACC + 8 * kk + 2 * i + 1}"
              for i in range(4)]
    rd = [f"ds_read_b128 {vr(ACC2 + 4 * i, 4)}, v{AGAM} offset:{B2OFF + 64 * (i // 2) + 16 * (i % 2)}" for i in range(12)]
    o += rd[:2] + [mf(ACC1, W1F + 20, BOP + 20, ACC1)] + rd[2:]
    o += stamp("ln")
    o += [f"s_cmp_lt_u32 s{WAVE}, 4", "s_cbranch_scc0 L_late"]
    return o


def mf(d, a, b, c):
    return f"v_mfma_f32_32x32x16_bf16 {vr(d, 16)}, {vr(a, 4)}, {vr(b, 4)}, {vr(c, 16)}"


def hreg(h, i):
    return ACC1 + 16 * ((h // 2) % 2) + 8 * (h % 2) + i


def treg(h, i):
    return TR + 8 * (h % 2) + i


def greg(h):
    return GR + 4 * (h % 2)


def ok(h):
    return 0 <= h < 24


def gemm2(h, frag):
    return [mf(ACC2 + 16 * m, frag + 4 * m, greg(h), ACC2 + 16 * m) for m in range(3)]


TAILFRAG = {23: W1F, 24: W2F + 12, 25: W1F + 12}


def S(b, fill=()):
    T = [f"v_rcp_f32 v{treg(b - 1, i)}, v{treg(b - 1, i)}" for i in range(8) if ok(b - 1)]
    T += [f"v_exp_f32 v{treg(b, i)}, v{treg(b, i)}" for i in range(8) if ok(b)]
    cv = [f"v_cvt_pk_bf16_f32 v{greg(b - 2) + i}, v{hreg(b - 2, 2 * i)}, v{hreg(b - 2, 2 * i + 1)}"
          for i in range(4) if ok(b - 2)]
    ms = []
    if b % 2 and b <= 21:
        d = ACC1 + 16 * (((b + 1) // 2) % 2)
        ms = [mf(d, W1F + 4 * k, BOP + 4 * k, BIAS if k == 0 else d) for k in range(6)]
    elif b >= 23:
        ms = gemm2(b - 2, TAILFRAG[b])
    elif b % 2 == 0 and b >= 2:
        ms = gemm2(b - 3, W2F) + gemm2(b - 2, W2F + 12)
    o = list(cv)
    if b >= 23:
        T = T + list(fill)
        o += T[:2]
        T = T[2:]
        n = 6 if b == 25 else 3
        for m in ms:
            o += [m] + T[:n]
            T = T[n:]
        return o + T
    for m in ms:
        o += [m] + T[:3]
        T = T[3:]
    return o + T


def F(b):
    o = [f"v_add_f32 v{treg(b, i)}, 1.0, v{treg(b, i)}" for i in range(8) if ok(b)]
    o += [f"v_mul_f32 v{hreg(b - 1, i)}, v{hreg(b - 1, i)}, v{treg(b - 1, i)}" for i in range(8) if ok(b - 1)]
    if ok(b + 1):
        o += [f"v_fmaak_f32 v{treg(b + 1, i)}, v{hreg(b + 1, i)}, v{hreg(b + 1, i)}, {f32(CGELU)}" for i in range(8)]
        o += [f"v_mul_f32 v{treg(b + 1, i)}, v{hreg(b + 1, i)}, v{treg(b + 1, i)}" for i in range(8)]
    return o


def w2reads(h, frag, base):
    off = (h // 4 - base) * PAIR + 12288 + 3072 * (h % 4)
    return [f"ds_read_b64_tr_b16 {vr(frag + 4 * m + 2 * hf, 2)}, v{AW2} offset:{off + 1536 * hf + 64 * m}"
            for m in range(3) for hf in range(2)]


def D(b, base):
    if b % 2 and b <= 21:
        ch = (b + 1) // 2
        off = (ch // 2 - base) * PAIR + 512 * (ch % 2)
        o = [f"ds_read_b128 {vr(BIAS + 4 * k, 4)}, v{ABI} offset:{128 * (ch - 2 * base) + 32 * k}" for k in range(4)]
        return o + [f"ds_read_b64_tr_b16 {vr(W1F + 2 * k, 2)}, v{AW1} offset:{off + 1024 * k}" for k in range(12)]
    if b >= 23:
        return w2reads(b - 2, TAILFRAG[b], base) if b <= 25 else []
    if b % 2 == 0 and b >= 2:
        return (w2reads(b - 3, W2F, base) if ok(b - 3) else []) + w2reads(b - 2, W2F + 12, base)
    return []


def block(role, b, base, pre=(), post=(), fast=()):
    w = ["s_waitcnt lgkmcnt(0)"]
    d = list(pre) + D(b + 1, base) + list(post)
    f = F(b) + list(fast)
    if role == "A":
        k = 1 if pre else 0
        return ["s_setprio 2"] + w + S(b) + d[:k] + ["s_setprio 0"] + d[k:] + f
    return w + d + ["s_setprio 1"] + S(b) + ["s_setprio 3"] + f


def mlp_head(grp, role):
    o = ["L_late:"] if grp == "L" else []
    o += ["s_setprio %d" % {"A": 0, "B": 3}[role], f"s_mov_b32 s{ITER}, 0",
          f"s_mov_b32 s{XK}, {kflag(4)}", f"v_mov_b32 v{PV}, 7", f"v_add_u32 v{FLG}, 4, v{FLR}"]
    o += F(-1)
    if grp == "E":
        o += block(role, 0, 0, post=flag_read(FV, False))
        o += block(role, 1, 0, pre=recheck("L_pollExDead", 5, FV, False), post=wdma([2]) + flag_read(FV))
    else:
        o += block(role, 0, 0) + block(role, 1, 0, post=flag_read(FV))
    o += stamp("head")
    return o


def late_dma(role):
    return (["L_lateDma:", "s_setprio 3"] + poll("L_pollDead", None, 5, TMP + 4) + wdma([3, 4, 5])
            + ["s_setprio %d" % {"A": 0, "B": 3}[role], "s_branch L_lateDone"])


def mlp_loop(grp, role):
    o = ([f".p2align {OPT['al']}"] if OPT["al"] else []) + ["s_nop 0"] * OPT["shift"] + [f"L_loop{grp}:"]
    o += block(role, 2, 0, pre=recheck(f"L_pollW{grp}", f"s{XK}", FV, False, FLG))
    o += block(role, 3, 0)
    o += block(role, 4, 0, post=["s_waitcnt vmcnt(0)"] * (grp == "E") + [f"ds_write_b8 v{FLW}, v{PV}"])
    late = [f"s_cmp_eq_u32 s{ITER}, 0", "s_cbranch_scc1 L_lateDma", "L_lateDone:"] if grp == "E" else []
    o += block(role, 5, 0, post=late + flag_read(FV, False))
    o += [f"v_add_u32 v{AW1}, {PAIR}, v{AW1}", f"v_add_u32 v{AW2}, {PAIR}, v{AW2}", f"v_add_u32 v{ABI}, 0x100, v{ABI}",
          f"v_add_u32 v{PV}, 1, v{PV}", f"v_mov_b32 v{FLG}, v{FLR}",
          f"s_sub_u32 s{XK}, s{XK}, 0x03030303", f"s_max_u32 s{XK}, s{XK}, {kflag(8)}",
          f"s_add_u32 s{ITER}, s{ITER}, 1"]
    o += [f"s_cmp_lt_u32 s{ITER}, 5", f"s_cbranch_scc1 L_loop{grp}"]
    return o


XF = [BIAS, BIAS + 8, BOP, BOP + 8, BOP + 16, TMP + 8]
GAM = [ACC1, ACC1 + 8, TMP, W2F, TR, TMP + 16]


def gam_reads(cis):
    return [f"ds_read_b128 {vr(GAM[ci] + 4 * t, 4)}, v{AGAM} offset:{GAMOFF + 64 * ci + 16 * t}" for ci in cis for t in range(2)]


def mlp_tail(role):
    hi = [f"v_and_b32 v{XF[ci] + 2 * j + 1}, 0xffff0000, v{XRES + 4 * ci + j}" for ci in range(6) for j in range(4)]
    o = stamp("loop") + block(role, 22, 5)
    o += block(role, 23, 5, post=gam_reads([2, 3, 5]), fast=hi[:16])
    o += block(role, 24, 5, post=gam_reads([0, 1, 4]) + [f"ds_read_b64 {vr(FV, 2)}, v{FLR}"],
               fast=hi[16:] + [f"v_xor_b32 v{XRA}, 32, v{OW}"])
    return o


def epilogue():
    lo = [f"v_lshlrev_b32 v{XF[ci] + 2 * j}, 16, v{XRES + 4 * ci + j}" for ci in range(6) for j in range(4)]
    o = ([f"s_setprio {OPT['eprio']}"] if OPT["eprio"] >= 0 else []) + ["s_waitcnt lgkmcnt(0)"] + S(25, lo)
    o += stamp("mlp")
    k = kflag(9)
    o += [f"v_readfirstlane_b32 s{SA}, v{FV}", f"v_readfirstlane_b32 s{SB}, v{FV + 1}",
          f"s_add_u32 s{SA}, s{SA}, {k}", f"s_add_u32 s{SB}, s{SB}, {k}", f"s_and_b32 s{SA}, s{SA}, s{SB}",
          f"s_andn2_b32 s{SA}, 0x80808080, s{SA}", "s_cbranch_scc0 L_outfree"]
    o += poll("L_pollOut", 9, 9, FV) + ["L_outfree:", f"s_mul_i32 s{SB}, s{WAVE}, 6144"]
    o += stamp("poll")
    for ci in range(6):
        o += [f"v_fmac_f32 v{XF[ci] + j}, v{ACC2 + 8 * ci + j}, v{GAM[ci] + j}" for j in range(8)]
        o += [f"v_cvt_pk_bf16_f32 v{XRES + 4 * ci + j}, v{XF[ci] + 2 * j}, v{XF[ci] + 2 * j + 1}" for j in range(4)]
        o += [f"ds_write_b128 v{XRA if ci % 2 else OW}, {vr(XRES + 4 * ci, 4)} offset:{64 * (ci // 2)}"]
    o += [f"v_add_u32 v{WV2}, s{SB}, v{WV2}", f"s_add_u32 s{SA}, s{OBASE}, {ROWB}"]
    o += stamp("lds", True)
    for k in range(6):
        o += [f"ds_read_b128 {vr(ACC1 + 4 * k, 4)}, v{WV2} offset:{1024 * k}"]
    for k in range(6):
        o += [f"s_waitcnt lgkmcnt({5 - k})",
              f"buffer_store_dwordx4 {vr(ACC1 + 4 * k, 4)}, v{GO + k % 3}, s[{SO}:{SO + 3}], s{OBASE if k < 3 else SA} offen {OPT['snt']}"]
    if OPT["stamps"]:
        o += stamp("issued_st") + ["s_waitcnt vmcnt(0)"] + stamp("end")
        o += ["s_memrealtime s[96:97]", "s_getreg_b32 s98, hwreg(HW_REG_HW_ID)", "s_waitcnt lgkmcnt(0)",
              f"s_lshl_b32 s{SA}, s2, 3", f"s_add_u32 s{SA}, s{SA}, s{WAVE}", f"s_lshl_b32 s{SA}, s{SA}, 6",
              f"v_mov_b32 v1, s{SA}"]
        n = nstamp[0]
        for i in range(n):
            o += [f"v_mov_b32 v{16 + i}, s{STAMP + 2 * i}"]
        o += [f"v_mov_b32 v{16 + i}, 0" for i in range(n, 13)]
        o += ["v_mov_b32 v29, s100", "v_mov_b32 v30, s96", "v_mov_b32 v31, s98"]
        o += [f"global_store_dwordx4 v1, {vr(16 + 4 * i, 4)}, s[20:21] offset:{16 * i}" for i in range(4)]
    return o


def main():
    segs = {}
    segs["setup"] = setup()
    segs["issueE"] = issue_e()
    segs["issueL"] = issue_l()
    segs["addr"] = addresses()
    segs["fragsE"] = frags("E")
    segs["fragsL"] = frags("L")
    segs["preE"] = pre_e()
    segs["preL"] = pre_l()
    segs["conv"] = conv()
    segs["ln"] = layernorm()
    roles = {"E": OPT["roles"][0], "L": OPT["roles"][1]}
    for g in "EL":
        segs["head" + g] = mlp_head(g, roles[g])
        segs["loop" + g] = mlp_loop(g, roles[g])
        segs["tail" + g] = mlp_tail(roles[g])
    segs["tailE"] += ["s_branch L_epi"]
    segs["lateDma"] = late_dma(roles["E"])
    segs["epi"] = ["L_epi:"] + epilogue()
    traces = {
        "E": ["setup", "issueE", "addr", "fragsE", "preE", "conv", "ln"],
        "L": ["setup", "issueL", "addr", "fragsL", "preL", "conv", "ln"]}
    for g in "EL":
        traces[g] += ["head" + g, "loop" + g, "loop" + g, "tail" + g, "epi"]
    traces["late"] = ["lateDma"]
    fix(segs, traces, verbose=bool(OPT.get("v")), lax=OPT["stamps"] and OPT["set"] == "cv")
    ref = open(f"cdna_kernels/{KN}.s.ref").read().split("\n")
    head = [l for l in ref if l.startswith(";") and "@launch" not in l]
    order = ["setup", "issueE", "addr", "fragsE", "preE", "conv", "ln", "headE", "loopE", "tailE", "lateDma",
             "issueL", "fragsL", "preL", "headL", "loopL", "tailL", "epi"]
    out = head + [f"; @launch grid=(200,1,1) block=(512,1,1) lds={LDS_BYTES}",
                  '.amdgcn_target "amdgcn-amd-amdhsa--gfx950"', ".text", f".globl {KN}_kernel", ".p2align 8",
                  f".type {KN}_kernel,@function", f"{KN}_kernel:"]
    for s in order:
        out += [f"; ---- {s}"] + [l if l.endswith(":") or l.startswith(".") else "    " + l.rstrip() for l in segs[s]]
    out += ["L_end:", "    s_endpgm", "L_codeend:",
            '.section .rodata,"a"', ".p2align 6", f".amdhsa_kernel {KN}_kernel",
            "  .amdhsa_next_free_vgpr 256", "  .amdhsa_next_free_sgpr 102", "  .amdhsa_accum_offset 256",
            "  .amdhsa_group_segment_fixed_size 0", "  .amdhsa_kernarg_size 80", "  .amdhsa_user_sgpr_count 2",
            "  .amdhsa_user_sgpr_kernarg_segment_ptr 1", "  .amdhsa_system_sgpr_workgroup_id_x 1",
            ".end_amdhsa_kernel"]
    open(sys.argv[1], "w").write("\n".join(out) + "\n")
    if OPT["stamps"]:
        open(sys.argv[1] + ".stamps", "w").write(" ".join(STAMPS))


if __name__ == "__main__":
    main()
```

```python
import math
import struct
import sys

from hazard import fix

KN = "standalone__modern_conv_block_convnext__vision"
OPT = dict(xnt="nt", snt="sc1", stamps=0, pf=1, roles="BA", set="all", al=0, shift=0, pairw=5, up=16, w0first=1, eprio=1, lconv=3, eln=2, xin=1, win=1, prerows=0, midrows=4, b4=-1)
for a in sys.argv[2:]:
    k, v = a.split("=")
    OPT[k] = int(v) if v.lstrip("-").isdigit() else v


def f32(x):
    return "0x%08x" % struct.unpack("<I", struct.pack("<f", x))[0]


LOG2E = 1.4426950408889634
K1 = 2.0 * math.sqrt(2.0 / math.pi)
BETA = -((LOG2E * K1 * 0.044715) ** (1.0 / 3.0))
CGELU = LOG2E * K1 / -BETA

PAIR = 24576
XIMG = 3 * PAIR
DWT = XIMG + 76800
TAB = DWT + 8192
FL = TAB + 4096
LDS_BYTES = FL + 64
B2OFF, GAMOFF = 2048, 3072
XB = 224 * 224 * 192
ROWB = 224 * 192
BIG = 0x20000000

LANE, XV, WV1, IDX, AW1, AW2, ABI, XRA, OW, WV2, GO, AGAM, FLW, FLR = 0, 1, 2, 3, 4, 5, 6, 7, 8, 9, 10, 13, 14, 15
CACC, AF, BB, CP, EXW, EXR, FLG, DVAL, DHOT = 16, 64, 124, 244, 247, 248, 249, 250, 251
ACC2, ACC1, BOP, W1F, W2F, GR, TR, BIAS, XRES, TMP = 16, 64, 96, 120, 144, 168, 176, 192, 208, 232
SX, SDW, SW1, SW2, ST, SO = 24, 28, 32, 36, 16, 40
P_B1, P_B2, P_GA = 4, 6, 8
WAVE, KQ, TY, TX, SROW, SM0, SA, SB, SC, OBASE, WG2, XK, WG1, WM0, ITER, SCALE = range(48, 64)
EXB = 10
STAMP = 64
nstamp = [0]


def stamp(name, drain=False, same=False):
    if not OPT["stamps"] or name not in STAMPSETS[OPT["set"]]:
        return []
    same = name in STAMPS
    if drain and OPT["set"] != "cv":
        return stamp(name) + ["s_waitcnt lgkmcnt(0)"]
    if same:
        n = STAMPS.index(name)
    else:
        n = nstamp[0]
        nstamp[0] += 1
        STAMPS.append(name)
    ins = "s_memrealtime" if OPT["stamps"] == 2 else "s_memtime"
    return [f"{ins} s[{STAMP + 2 * n}:{STAMP + 2 * n + 1}]"]


STAMPS = []
STAMPSETS = {
    "all": "start karg issued dw frags x conv ln mlp issued_st end".split(),
    "pro": "start karg issued addr landed tab dw frags x conv stats ln end".split(),
    "cv": "start x c0 c1 c2 conv sig stats l0 l1 l2 ln end".split(),
    "m2": "start x conv ln head loop mlp poll lds issued_st end".split(),
    "mlp": "start ln head it0 it1 it2 it3 it4 mlp poll lds issued_st end".split(),
}


def vr(b, n):
    return f"v[{b}:{b + n - 1}]"


def srd(base, size):
    return [f"s_mov_b32 s{base + 2}, {size}", f"s_mov_b32 s{base + 3}, 0x20000"]


def poll(name, ka=None, kb=None, tmp=None, addr=FLR):
    def chk(reg, k):
        k = k if isinstance(k, str) else hex((0x80 - k) * 0x01010101)
        return [f"v_readfirstlane_b32 s{SA}, v{reg}", f"s_add_u32 s{SA}, s{SA}, {k}",
                f"s_andn2_b32 s{SA}, 0x80808080, s{SA}", f"s_cbranch_scc1 {name}"]
    if ka is not None and kb is not None:
        return [f"{name}:", f"ds_read_b64 {vr(tmp, 2)}, v{FLR}", "s_waitcnt lgkmcnt(0)"] + chk(tmp, ka) + chk(tmp + 1, kb)
    off = 0 if kb is None else 4
    return [f"{name}:", f"ds_read_b32 v{tmp}, v{addr} offset:{off}", "s_waitcnt lgkmcnt(0)"] + chk(tmp, kb if off else ka)


def recheck(name, k, tmp, late=True, addr=FLR):
    kk = k if isinstance(k, str) else hex((0x80 - k) * 0x01010101)
    return [f"v_readfirstlane_b32 s{SA}, v{tmp}", f"s_add_u32 s{SA}, s{SA}, {kk}",
            f"s_andn2_b32 s{SA}, 0x80808080, s{SA}", f"s_cbranch_scc0 {name}_ok"] + (
                poll(name, None, k, tmp) if late else poll(name, k, None, tmp, addr)) + [f"{name}_ok:"]


def flag_read(tmp, late=True):
    return [f"ds_read_b32 v{tmp}, v{FLR} offset:{4 if late else 0}"]


def signal(stage, tmp):
    return [f"v_mov_b32 v{tmp}, {stage}", f"ds_write_b8 v{FLW}, v{tmp}"]


def kflag(k):
    return hex((0x80 - k) * 0x01010101)


def flag_reset():
    return [f"v_mov_b32 v{FLR}, {FL}", f"v_mov_b32 v{IDX}, 0", f"v_add_u32 v{FLW}, s{WAVE}, v{FLR}",
            f"ds_write_b8 v{FLW}, v{IDX}"]


def setup():
    o = stamp("start")
    o += [f"s_load_dwordx2 s[{SX}:{SX + 1}], s[0:1], 0",
          f"v_readfirstlane_b32 s{WAVE}, v0",
          f"s_and_b32 s{SA}, s2, 7", f"s_lshr_b32 s{SB}, s2, 3", f"s_mul_i32 s{SA}, s{SA}, 25",
          f"s_cmp_ge_u32 s{SB}, 25", "s_cbranch_scc1 L_end",
          f"s_add_u32 s{SA}, s{SA}, s{SB}",
          f"s_cmp_ge_u32 s{SA}, 196", "s_cbranch_scc1 L_end",
          f"s_lshr_b32 s{WAVE}, s{WAVE}, 6",
          f"v_and_b32 v{LANE}, 63, v0",
          f"s_mul_hi_u32 s{TY}, s{SA}, 0x12492493",
          f"s_and_b32 s{KQ}, s{WAVE}, 3",
          f"s_mul_i32 s{SB}, s{TY}, 14", f"s_sub_u32 s{TX}, s{SA}, s{SB}",
          f"s_cmp_lt_u32 s{WAVE}, 4", "s_cbranch_scc0 L_issueL"]
    return o


def more_args():
    o = [f"s_load_dwordx2 s[{SW1}:{SW1 + 1}], s[0:1], 16",
         f"s_load_dwordx2 s[{SW2}:{SW2 + 1}], s[0:1], 32",
         f"s_load_dwordx2 s[{SO}:{SO + 1}], s[0:1], 56"]
    if OPT["stamps"]:
        o += ["s_load_dwordx2 s[20:21], s[0:1], 72", "s_memrealtime s[100:101]"]
    return o


def xrow(r):
    return [f"s_add_u32 m0, s{SM0}, {3840 * r}", f"s_add_u32 s{SA}, s{SROW}, {ROWB * r}",
            f"buffer_load_dwordx4 v{XV}, s[{SX}:{SX + 3}], s{SA} offen {OPT['xnt']} lds"]


AP, MASK, TABV, PFV, SETT, PP = BB, BB + 4, BB + 8, BB + 16, BB + 18, BB + 32


def xaddr_dma():
    a, b, c = SETT, SETT + 1, SETT + 2
    o = [f"v_mul_u32_u24 v{a}, 43, v{LANE}", f"s_mul_i32 s{SB}, s{KQ}, 5", f"v_lshrrev_b32 v{a}, 9, v{a}",
         f"v_mul_u32_u24 v{b}, 12, v{a}", f"v_add_u32 v{a}, s{SB}, v{a}", f"v_sub_u32 v{b}, v{LANE}, v{b}",
         f"s_lshl_b32 s{SB}, s{TX}, 4", f"v_bfe_u32 v{c}, v{a}, 2, 2", f"s_sub_u32 s{SB}, s{SB}, 2",
         f"v_xor_b32 v{b}, v{b}, v{c}", f"v_add_u32 v{a}, s{SB}, v{a}",
         f"v_min_u32 v{a}, 0xe0, v{a}", f"v_add_u32 v{c}, 32, v{a}", f"v_lshrrev_b32 v{c}, 8, v{c}",
         f"v_mul_u32_u24 v{a}, 0xc0, v{a}", f"v_lshl_add_u32 v{a}, v{b}, 4, v{a}",
         f"v_lshl_add_u32 v{XV}, v{c}, 29, v{a}",
         f"s_mul_i32 s{SROW}, s{TY}, {16 * ROWB}", f"s_sub_u32 s{SROW}, s{SROW}, {2 * ROWB}",
         f"s_mul_i32 s{SM0}, s{KQ}, 960", f"s_add_u32 s{SM0}, s{SM0}, {XIMG}"]
    return o + srd(SX, XB)


M60, MFULL = ["s_bfm_b64 exec, 60, 0"], ["s_mov_b64 exec, -1"]


def issue_e():
    a, b = SETT + 3, SETT + 4
    o = ["s_setprio 3", f"s_load_dwordx2 s[{SDW}:{SDW + 1}], s[0:1], 8",
         f"s_load_dwordx2 s[{P_B1}:{P_B1 + 1}], s[0:1], 24",
         f"s_load_dwordx2 s[{P_B2}:{P_B2 + 1}], s[0:1], 40",
         f"s_load_dwordx2 s[{P_GA}:{P_GA + 1}], s[0:1], 48",
         f"v_lshlrev_b32 v{WV2}, 4, v{LANE}",
         f"s_lshl_b32 s{SB}, s{KQ}, 11", f"s_sub_u32 s{SC}, s{SB}, 960", f"v_add_u32 v{a}, s{SC}, v{WV2}",
         f"v_add_u32 v{b}, 0x400, v{a}", f"s_add_u32 m0, s{SB}, {DWT}"] + srd(SDW, 4800) + xaddr_dma()
    o += [f"s_mov_b32 s{ST + 3}, 0x20000",
          f"s_cmp_lt_u32 s{KQ}, 2", f"s_movk_i32 s{ST + 2}, 192", f"s_cmov_b32 s{ST + 2}, 768",
          f"s_cselect_b32 s{SC}, s{KQ}, 0", f"s_lshl_b32 s{SC}, s{SC}, 9",
          f"v_lshl_add_u32 v{TABV + 2}, v{LANE}, 3, s{SC}",
          f"s_cmp_eq_u32 s{TY}, 0", f"s_cselect_b32 s{SB}, {BIG}, s{SROW}", "s_waitcnt lgkmcnt(0)"] + stamp("karg")
    o += [f"buffer_load_dwordx4 v{a}, s[{SDW}:{SDW + 3}], 0 offen lds",
          f"s_add_u32 m0, m0, 0x400",
          f"s_cmp_eq_u32 s{KQ}, 2", f"s_cselect_b64 s[{ST}:{ST + 1}], s[{P_B2}:{P_B2 + 1}], s[{P_B1}:{P_B1 + 1}]",
          f"buffer_load_dwordx4 v{b}, s[{SDW}:{SDW + 3}], 0 offen lds",
          f"s_cmp_eq_u32 s{KQ}, 3", f"s_cselect_b64 s[{ST}:{ST + 1}], s[{P_GA}:{P_GA + 1}], s[{ST}:{ST + 1}]",
          f"s_mov_b32 s{SCALE}, {f32(BETA)}", f"s_cmov_b32 s{SCALE}, {f32(1.0 / BETA)}",
          f"s_mov_b32 m0, s{SM0}",
          f"buffer_load_dwordx2 {vr(TABV, 2)}, v{TABV + 2}, s[{ST}:{ST + 3}], 0 offen"] + M60
    o += [f"buffer_load_dwordx4 v{XV}, s[{SX}:{SX + 3}], s{SB} offen {OPT['xnt']} lds",
          f"s_add_u32 m0, s{SM0}, 3840", f"s_add_u32 s{SB}, s{SB}, {ROWB}",
          f"buffer_load_dwordx4 v{XV}, s[{SX}:{SX + 3}], s{SB} offen {OPT['xnt']} lds"] + more_args()
    for r in range(2, 12):
        o += xrow(r)
    o += MFULL + flag_reset() + [f"s_mov_b32 s{EXB}, {2 * PAIR}"]
    return o


def issue_l():
    o = ["L_issueL:"] + more_args() + [f"v_lshlrev_b32 v{WV2}, 4, v{LANE}"] + xaddr_dma()
    o += flag_reset() + [f"s_mov_b32 s{EXB}, {XIMG}"] + stamp("karg") + ["s_branch L_addr"]
    return o


def wpiece(grp, k):
    if grp == "E":
        o = [f"s_add_u32 m0, s{WM0}, {1024 * k}", f"s_add_u32 s{SA}, s{WG1}, {6144 * k}",
             f"buffer_load_dwordx4 v{WV1}, s[{SW1}:{SW1 + 3}], s{SA} offen lds"]
        return o + [f"s_add_u32 s{WM0}, s{WM0}, {PAIR}", f"s_add_u32 s{WG1}, s{WG1}, 128"] * (k == 2)
    o = [f"s_mov_b32 m0, s{WM0}", f"s_add_u32 s{WM0}, s{WM0}, {PAIR}"] * (k == 0)
    o += [f"buffer_load_dwordx4 v{WV2}, s[{SW2}:{SW2 + 3}], s{WG2} offen offset:{1024 * k} lds"]
    return o + [f"s_add_u32 s{WG2}, s{WG2}, 12288"] * (k == 2)


def wdma(pairs, w1=True, w2=True):
    o = []
    for p in pairs:
        for i in range(3 * w1):
            o += [f"s_add_u32 m0, s{WM0}, {PAIR * p + 1024 * i}", f"s_add_u32 s{SA}, s{WG1}, {128 * p + 6144 * i}",
                  f"buffer_load_dwordx4 v{WV1}, s[{SW1}:{SW1 + 3}], s{SA} offen lds"]
        if not w2:
            continue
        o += [f"s_add_u32 m0, s{WM0}, {PAIR * p + 12288}", f"s_add_u32 s{SA}, s{WM0}, {12288 * p}"]
        o += [f"buffer_load_dwordx4 v{WV2}, s[{SW2}:{SW2 + 3}], s{SA} offen offset:{1024 * i} lds" for i in range(3)]
    return o


def addresses():
    o = ["L_addr:"]
    o += stamp("issued")
    n, g, hf, s, rho, c, t, u, w = (SETT + 5 + i for i in range(9))
    o += [f"v_and_b32 v{n}, 15, v{LANE}", f"v_lshrrev_b32 v{g}, 4, v{LANE}", f"v_lshrrev_b32 v{hf}, 5, v{LANE}",
          f"v_and_b32 v{s}, 1, v{g}", f"v_bfe_u32 v{rho}, v{LANE}, 2, 2", f"v_and_b32 v{c}, 3, v{LANE}"]
    o += [f"v_bfe_u32 v{t}, v{LANE}, 2, 3", f"v_mul_u32_u24 v{t}, 0x300, v{t}",
          f"v_lshl_add_u32 v{t}, v{hf}, 6, v{t}", f"v_lshl_add_u32 v{WV1}, v{c}, 4, v{t}",
          f"s_mul_i32 s{WM0}, s{KQ}, 3072", f"s_mul_i32 s{WG1}, s{KQ}, 18432"]
    o += srd(SW1, 73728) + srd(SW2, 73728) + srd(SO, XB)
    o += [f"v_mul_u32_u24 v{IDX}, 0x5555, v{c}"]
    o += [f"s_lshl_b32 s{SA}, s{KQ}, 4", f"s_add_u32 s{SA}, s{SA}, {DWT + 960}",
          f"v_and_b32 v{t}, 2, v{c}", f"v_and_b32 v{u}, 1, v{c}", f"v_mul_u32_u24 v{u}, 960, v{u}",
          f"v_lshlrev_b32 v{t}, 2, v{t}", f"v_lshl_add_u32 v{t}, v{rho}, 6, v{t}",
          f"v_sub_u32 v{t}, v{t}, v{u}", f"v_add_u32 v{t}, s{SA}, v{t}",
          f"v_lshlrev_b32 v{w}, 3, v{g}", f"s_movk_i32 s{SB}, 0xc0"]
    for q, tab in enumerate([[0, 2, 1, 3], [4, 14, 24, 30], [30, 4, 14, 24]]):
        cst = sum(v << (8 * i) for i, v in enumerate(tab))
        o += [f"s_mov_b32 s{SA}, {cst}", f"v_bfe_u32 v{AP + q}, s{SA}, v{w}, 8",
              f"v_mad_u32_u24 v{AP + q}, v{AP + q}, s{SB}, v{t}"]
    o += [f"v_bfe_i32 v{t}, v{LANE}, 3, 1", f"v_lshrrev_b32 v{MASK + 2}, 16, v{t}",
          f"v_and_b32 v{MASK + 3}, 0xffff0000, v{t}", f"v_xor_b32 v{MASK}, 0xffff, v{MASK + 2}",
          f"v_xor_b32 v{MASK + 1}, 0xffff0000, v{MASK + 3}"]

    def xaddr(dst, col, row, extra):
        return [f"v_bfe_u32 v{t}, v{col}, 2, 2", f"v_xor_b32 v{t}, {extra}, v{t}",
                f"v_mul_u32_u24 v{u}, 0xc0, v{col}", f"v_lshl_add_u32 v{t}, v{t}, 4, v{u}",
                f"v_mul_u32_u24 v{u}, 0xf00, v{row}", f"v_add3_u32 v{dst}, v{t}, v{u}, s{SB}"]
    o += [f"s_lshr_b32 s{SB}, s{WAVE}, 2", f"s_mul_i32 s{SB}, s{SB}, 30720", f"s_add_u32 s{SB}, s{SB}, {XIMG}"]
    o += [f"v_lshl_add_u32 v{w}, v{hf}, 1, v{n}"] + xaddr(CP, w, s, f"s{KQ}")
    o += [f"v_add_u32 v{w}, 1, v{w}"] + xaddr(CP + 1, w, s, f"s{KQ}")
    o += [f"v_add_u32 v{w}, 4, v{n}"] + xaddr(CP + 2, w, g, f"s{KQ}")
    o += [f"s_mul_i32 s{SB}, s{WAVE}, 7680", f"s_add_u32 s{SB}, s{SB}, {XIMG + 7680}",
          f"v_add_u32 v{w}, 2, v{n}"] + xaddr(XRA, w, s, f"v{hf}")
    o += [f"v_lshl_add_u32 v{EXR}, v{LANE}, 3, s{EXB}", f"s_lshl_b32 s{SA}, s{KQ}, 9", f"v_add_u32 v{EXW}, s{SA}, v{EXR}",
          f"s_mul_i32 s{SA}, s{KQ}, 6144", f"v_add_u32 v{EXR}, s{SA}, v{EXR}"]
    o += [f"v_and_b32 v{t}, 1, v{c}", f"v_lshlrev_b32 v{t}, 4, v{t}", f"s_movk_i32 s{SA}, 0x3f80",
          f"v_lshlrev_b32_e64 v{DVAL}, v{t}, s{SA}",
          f"v_xor_b32 v{t}, v{rho}, v{hf}", f"v_and_b32 v{t}, 1, v{t}", f"v_xor_b32 v{t}, 1, v{t}",
          f"v_bfe_u32 v{u}, v{LANE}, 3, 2", f"v_lshrrev_b32 v{w}, 1, v{c}", f"v_lshl_add_u32 v{u}, v{u}, 1, v{w}",
          f"v_lshlrev_b32 v{DHOT}, v{u}, v{t}"]
    o += [f"v_lshl_add_u32 v{t}, v{hf}, 2, v{rho}", f"v_lshlrev_b32 v{u}, 5, v{s}",
          f"v_lshl_add_u32 v{w}, v{c}, 3, v{u}", f"v_lshl_add_u32 v{AW1}, v{t}, 6, v{w}",
          f"v_mul_u32_u24 v{t}, 0xc0, v{t}", f"v_and_b32 v{w}, 1, v{c}", f"v_lshl_add_u32 v{u}, v{w}, 4, v{u}",
          f"v_lshrrev_b32 v{w}, 1, v{c}", f"v_lshl_add_u32 v{u}, v{w}, 3, v{u}", f"v_add_u32 v{AW2}, v{t}, v{u}",
          f"v_lshlrev_b32 v{t}, 4, v{hf}", f"v_add_u32 v{ABI}, {TAB}, v{t}",
          f"v_add_u32 v{AGAM}, v{ABI}, v{t}"]
    o += [f"s_mul_i32 s{SB}, s{WAVE}, 6144",
          f"v_bfe_u32 v{t}, v{n}, 1, 2", f"v_xor_b32 v{t}, v{t}, v{hf}", f"v_and_b32 v{u}, 31, v{LANE}",
          f"v_mul_u32_u24 v{u}, 0xc0, v{u}", f"v_lshl_add_u32 v{t}, v{t}, 4, v{u}", f"v_add_u32 v{OW}, s{SB}, v{t}"]
    for k in range(3):
        o += [f"v_add_u32 v{t}, {64 * k}, v{LANE}", f"v_mul_u32_u24 v{u}, 171, v{t}",
              f"v_bfe_u32 v{u}, v{u}, 12, 2", f"v_xor_b32 v{t}, v{t}, v{u}", f"v_lshlrev_b32 v{GO + k}, 4, v{t}"]
    o += [f"s_lshl_b32 s{SA}, s{TY}, 4", f"s_lshl_b32 s{SB}, s{WAVE}, 1", f"s_add_u32 s{SA}, s{SA}, s{SB}",
          f"s_mul_i32 s{SA}, s{SA}, {ROWB}", f"s_mul_i32 s{SB}, s{TX}, 3072", f"s_add_u32 s{OBASE}, s{SA}, s{SB}",
          ]
    o += [f"v_mov_b32 v{CACC + i}, 0" for i in range(48)]
    o += stamp("addr")
    o += [f"s_cmp_lt_u32 s{WAVE}, 4", "s_cbranch_scc0 L_loadL"]
    return o


def af(a, f):
    return AF + 20 * a + 4 * f


def frags(grp):
    pre, mid = OPT["prerows"], OPT["midrows"]
    o = ["s_waitcnt vmcnt(13) lgkmcnt(0)"] if grp == "E" else ["L_loadL:", "s_waitcnt lgkmcnt(0)"]
    if grp == "L" and OPT["pf"]:
        o += ["s_cmp_ge_u32 s2, 8", "s_cbranch_scc1 L_nopf",
              "s_getpc_b64 s[14:15]", "L_pc:", f"s_lshl_b32 s{SB}, s{KQ}, 13",
              f"v_lshl_add_u32 v{SETT}, v{LANE}, 7, s{SB}",
              f"v_min_u32 v{SETT}, L_codeend-L_convE-4, v{SETT}", "s_sub_u32 s14, s14, L_pc-L_convE",
              "s_subb_u32 s15, s15, 0", f"global_load_dword v{PFV}, v{SETT}, s[14:15]", "L_nopf:"]
    if grp == "L" and pre:
        o += M60 + sum((xrow(r) for r in range(12, 12 + pre)), []) + MFULL
    o += ["s_barrier"] + stamp("dw", True)
    for f in range(5):
        for pp in range(2):
            o += [f"ds_read_b64_tr_b16 {vr(PP + 4 * f + 2 * pp, 2)}, v{AP + max(f - 2, 0)} "
                  f"offset:{960 * pp + (1920 * f if f < 3 else 0)}"]
    if grp == "L":
        o += M60 + sum((xrow(r) for r in range(12 + pre, 12 + mid)), []) + MFULL
    for f in range(5):
        o += [f"s_waitcnt lgkmcnt({8 - 2 * f})"]
        for pp in range(2):
            for a in range(3):
                for g in range(2):
                    o += [f"v_and_b32 v{af(a, f) + 2 * pp + g}, v{PP + 4 * f + 2 * pp + a // 2}, v{MASK + 2 * g + a % 2}"]
    o += stamp("frags")
    return o


def pre_l():
    o = ["s_barrier"] + M60 + sum((xrow(r) for r in range(12 + OPT["midrows"], 20)), []) + MFULL
    o += wdma([0], w1=False) + wdma([1]) + stamp("tab")
    o += [f"s_add_u32 s{WG2}, s{WM0}, {2 * 12288}", f"s_add_u32 s{WM0}, s{WM0}, {2 * PAIR + 12288}"]
    return o + ["s_waitcnt vmcnt(9)", f"s_setprio {OPT['lconv']}", "s_barrier"]


def pre_e():
    a = TABV
    o = wdma([0], w2=False)
    o += [f"s_lshl_b32 s{SA}, s{KQ}, 10", f"s_add_u32 s{SA}, s{SA}, {TAB}", f"v_add_u32 v{a + 2}, s{SA}, v{WV2}",
          "s_waitcnt vmcnt(15)",
          f"v_lshlrev_b32 v{a + 4}, 16, v{a}", f"v_and_b32 v{a + 5}, 0xffff0000, v{a}",
          f"v_lshlrev_b32 v{a + 6}, 16, v{a + 1}", f"v_and_b32 v{a + 7}, 0xffff0000, v{a + 1}"]
    o += [f"v_mul_f32 v{a + 4 + i}, s{SCALE}, v{a + 4 + i}" for i in range(4)]
    o += [f"ds_write_b128 v{a + 2}, {vr(a + 4, 4)}",
          f"s_add_u32 s{WM0}, s{WM0}, {2 * PAIR}", f"s_add_u32 s{WG1}, s{WG1}, 256", "s_waitcnt vmcnt(3)"]
    return o + stamp("tab") + ["s_barrier"]


FV, PV = LANE, IDX


class LdsQueue:
    def __init__(self):
        self.n = 0
        self.done = 0

    def issue(self, lines):
        self.n += sum(l.startswith("ds_") for l in lines)
        return lines

    def wait(self, upto):
        if upto <= self.done:
            return []
        self.done = upto
        assert self.n - upto <= 15
        return [f"s_waitcnt lgkmcnt({self.n - upto})"]


DG, NEG, SUMD = AF + 8, AF + 16, TR


def cacc(a, t):
    return CACC + 16 * a + 4 * t


def conv(grp):
    o = [f"L_conv{grp}:"] + stamp("x", True)
    q = LdsQueue()
    mark = {}

    def reads(a, u):
        b = BB + 60 * (a % 2)
        if u < 6:
            r = [f"ds_read_b128 {vr(b + 8 * u + 4 * h, 4)}, v{CP + h} offset:{7680 * u + 64 * a}" for h in range(2)]
        else:
            r = [f"ds_read_b128 {vr(b + 48 + 4 * j, 4)}, v{CP + 2} offset:{15360 * j + 64 * a}"
                 for j in ((0, 1) if u == 6 else (2,))]
        q.issue(r)
        mark[a, u] = q.n
        return r

    def pack(a):
        return [f"v_cvt_pk_bf16_f32 v{af(a, 0) + 2 * t + i}, v{cacc(a, t) + 2 * i}, v{cacc(a, t) + 2 * i + 1}"
                for t in range(4) for i in range(2)]

    def sm(a, t, f, b):
        return f"v_smfmac_f32_16x16x64_bf16 {vr(cacc(a, t), 4)}, {vr(af(a, f), 4)}, {vr(b, 8)}, v{IDX}"

    def put(a, t):
        return [f"ds_write_b64 v{EXW}, {vr(af(a, 0) + 2 * t, 2)} offset:{6144 * t + 2048 * a}"]
    xres = [f"ds_read_b128 {vr(XRES + 8 * a, 4)}, v{XRA} offset:{64 * a}" for a in range(3)]
    xres += [f"v_xor_b32 v{XRA}, 32, v{XRA}"]
    xres += [f"ds_read_b128 {vr(XRES + 8 * a + 4, 4)}, v{XRA} offset:{64 * a}" for a in range(3)]
    for u in range(8):
        o += reads(0, u)
    for a in range(3):
        b = BB + 60 * (a % 2)
        pk = pack(a - 1) if a else []
        for u in range(8):
            o += q.wait(mark[a, u])
            if u == 0:
                o += stamp(f"c{a}")
            if a < 2:
                o += reads(a + 1, u)
            else:
                if OPT["xin"]:
                    o += q.issue(xres[u:u + 1] if u < 3 else xres[3:5] if u == 3 else xres[u + 1:u + 2])
                if OPT["win"]:
                    o += q.issue(put(u // 4, u % 4))
            if u < 6:
                ms = [sm(a, t, u - t, b + 8 * u) for t in range(4) if 0 <= u - t <= 2]
            else:
                ms = [sm(a, t, 3 + t % 2, b + 48 + 4 * (t // 2)) for t in ((0, 1) if u == 6 else (2, 3))]
            for m in ms:
                o += [m]
                if u >= 1:
                    o += pk[:1]
                    pk = pk[1:]
    o += stamp("conv", True)
    if not OPT["xin"]:
        o += xres
    if not OPT["win"]:
        o += sum((put(u // 4, u % 4) for u in range(8)), [])
    pk = pack(2)
    for t in range(4):
        o += pk[2 * t:2 * t + 2] + put(2, t)
    if grp == "L":
        o += ["s_waitcnt vmcnt(0)"] + signal(4, TMP + 2)
    o += stamp("sig")
    o += [f"v_bfe_i32 v{DG + i}, v{DHOT}, {i}, 1" for i in range(8)]
    o += [f"v_and_b32 v{DG + i}, v{DG + i}, v{DVAL}" for i in range(8)]
    o += [f"v_mov_b32 v{NEG + i}, 0xbf80bf80" for i in range(4)]
    o += [f"v_mov_b32 v{GR + 4 + i}, 0" for i in range(4)]
    o += [f"v_mov_b32 v{TMP + 1}, {f32(1e-5)}", f"v_mov_b32 v{PV}, 6"]
    if grp == "E":
        o += ["s_waitcnt vmcnt(0) lgkmcnt(0)", "s_barrier"]
    else:
        o += ["s_setprio 3"] + poll("L_pollEx", None, 4, TMP + 4)
    o += stamp("stats", True)
    return o


def layernorm(grp):
    q = [TMP + 6, TMP + 7]
    d = D(-1, 0)
    o = [] if grp == "L" else [f"s_setprio {OPT['eln']}"]
    o += [f"ds_read_b64 {vr(BOP + 2 * cg, 2)}, v{EXR} offset:{512 * cg}" for cg in range(12)]


    def wide(kk):
        dst = CACC + 16 * (kk // 2)
        return f"v_mfma_f32_32x32x16_bf16 {vr(dst, 16)}, {vr(DG + 4 * (kk % 2), 4)}, {vr(BOP + 4 * kk, 4)}, {vr(dst, 16) if kk % 2 else 0}"

    def total(kk):
        return f"v_mfma_f32_32x32x16_bf16 {vr(SUMD, 16)}, {vr(NEG, 4)}, {vr(BOP + 4 * kk, 4)}, {vr(SUMD, 16) if kk else 0}"
    sq = [f"v_mul_f32 v{q[j]}, v{CACC + j}, v{CACC + j}" for j in range(2)]
    sq += [f"v_fmac_f32 v{q[j % 2]}, v{CACC + j}, v{CACC + j}" for j in range(2, 48)]
    o += ["s_waitcnt lgkmcnt(10)", wide(0), "s_waitcnt lgkmcnt(8)", wide(1), "s_waitcnt lgkmcnt(4)"] + d[:4] + [wide(2)]
    o += d[4:8] + [wide(3), "s_waitcnt lgkmcnt(8)", f"ds_write_b8 v{FLW}, v{PV}"] + d[8:11] + [wide(4)] + stamp("l0")
    o += d[11:16] + [wide(5)]
    for kk in range(6):
        o += sq[6 * kk:6 * kk + 6] + [total(kk)]
    o += sq[36:] + stamp("l1")
    o += [f"v_add_f32 v{q[0]}, v{q[0]}, v{q[1]}", f"v_mov_b32 v{q[1]}, v{q[0]}",
          f"v_mul_f32 v{SUMD}, {f32(1 / 96)}, v{SUMD}",
          f"v_permlane32_swap_b32 v{q[0]}, v{q[1]}", f"v_add_f32 v{q[0]}, v{q[0]}, v{q[1]}",
          f"v_fmamk_f32 v{q[0]}, v{q[0]}, {f32(1 / 96)}, v{TMP + 1}", f"v_fma_f32 v{q[0]}, -v{SUMD}, v{SUMD}, v{q[0]}",
          f"v_max_f32 v{q[0]}, v{TMP + 1}, v{q[0]}", f"v_rsq_f32 v{TMP}, v{q[0]}",
          "s_waitcnt lgkmcnt(0)", f"v_mul_f32 v{TMP}, {f32(BETA)}, v{TMP}",
          f"v_mul_f32 v{TMP + 1}, v{SUMD}, v{TMP}"] + stamp("l2")
    for kk in range(6):
        o += [f"v_fma_f32 v{CACC + 8 * kk + j}, v{CACC + 8 * kk + j}, v{TMP}, v{TMP + 1}" for j in range(8)]
        if kk:
            o += [mf(ACC1, W1F + 4 * (kk - 1), BOP + 4 * (kk - 1), BIAS if kk == 1 else ACC1)]
        o += [f"v_cvt_pk_bf16_f32 v{BOP + 4 * kk + i}, v{CACC + 8 * kk + 2 * i}, v{CACC + 8 * kk + 2 * i + 1}"
              for i in range(4)]
    rd = [f"ds_read_b128 {vr(ACC2 + 4 * i, 4)}, v{AGAM} offset:{B2OFF + 64 * (i // 2) + 16 * (i % 2)}" for i in range(12)]
    o += rd[:2] + [mf(ACC1, W1F + 20, BOP + 20, ACC1)] + rd[2:]
    o += stamp("ln")
    return o


def mf(d, a, b, c):
    return f"v_mfma_f32_32x32x16_bf16 {vr(d, 16)}, {vr(a, 4)}, {vr(b, 4)}, {vr(c, 16)}"


def hreg(h, i):
    return ACC1 + 16 * ((h // 2) % 2) + 8 * (h % 2) + i


def treg(h, i):
    return TR + 8 * (h % 2) + i


def greg(h):
    return GR + 4 * (h % 2)


def ok(h):
    return 0 <= h < 24


def gemm2(h, frag):
    return [mf(ACC2 + 16 * m, frag + 4 * m, greg(h), ACC2 + 16 * m) for m in range(3)]


TAILFRAG = {23: W1F, 24: W2F + 12, 25: W1F + 12}


def S(b, fill=()):
    T = [f"v_rcp_f32 v{treg(b - 1, i)}, v{treg(b - 1, i)}" for i in range(8) if ok(b - 1)]
    T += [f"v_exp_f32 v{treg(b, i)}, v{treg(b, i)}" for i in range(8) if ok(b)]
    cv = [f"v_cvt_pk_bf16_f32 v{greg(b - 2) + i}, v{hreg(b - 2, 2 * i)}, v{hreg(b - 2, 2 * i + 1)}"
          for i in range(4) if ok(b - 2)]
    ms = []
    if b % 2 and b <= 21:
        d = ACC1 + 16 * (((b + 1) // 2) % 2)
        ms = [mf(d, W1F + 4 * k, BOP + 4 * k, BIAS if k == 0 else d) for k in range(6)]
    elif b >= 23:
        ms = gemm2(b - 2, TAILFRAG[b])
    elif b % 2 == 0 and b >= 2:
        ms = gemm2(b - 3, W2F) + gemm2(b - 2, W2F + 12)
    o = list(cv)
    if b >= 23:
        T = T + list(fill)
        o += T[:2]
        T = T[2:]
        n = 6 if b == 25 else 3
        for m in ms:
            o += [m] + T[:n]
            T = T[n:]
        return o + T
    for m in ms:
        o += [m] + T[:3]
        T = T[3:]
    return o + T


def F(b):
    o = [f"v_add_f32 v{treg(b, i)}, 1.0, v{treg(b, i)}" for i in range(8) if ok(b)]
    o += [f"v_mul_f32 v{hreg(b - 1, i)}, v{hreg(b - 1, i)}, v{treg(b - 1, i)}" for i in range(8) if ok(b - 1)]
    if ok(b + 1):
        o += [f"v_fmaak_f32 v{treg(b + 1, i)}, v{hreg(b + 1, i)}, v{hreg(b + 1, i)}, {f32(CGELU)}" for i in range(8)]
        o += [f"v_mul_f32 v{treg(b + 1, i)}, v{hreg(b + 1, i)}, v{treg(b + 1, i)}" for i in range(8)]
    return o


def w2reads(h, frag, base):
    off = (h // 4 - base) * PAIR + 12288 + 3072 * (h % 4)
    return [f"ds_read_b64_tr_b16 {vr(frag + 4 * m + 2 * hf, 2)}, v{AW2} offset:{off + 1536 * hf + 64 * m}"
            for m in range(3) for hf in range(2)]


def D(b, base):
    if b % 2 and b <= 21:
        ch = (b + 1) // 2
        off = (ch // 2 - base) * PAIR + 512 * (ch % 2)
        o = [f"ds_read_b128 {vr(BIAS + 4 * k, 4)}, v{ABI} offset:{128 * (ch - 2 * base) + 32 * k}" for k in range(4)]
        return o + [f"ds_read_b64_tr_b16 {vr(W1F + 2 * k, 2)}, v{AW1} offset:{off + 1024 * k}" for k in range(12)]
    if b >= 23:
        return w2reads(b - 2, TAILFRAG[b], base) if b <= 25 else []
    if b % 2 == 0 and b >= 2:
        return (w2reads(b - 3, W2F, base) if ok(b - 3) else []) + w2reads(b - 2, W2F + 12, base)
    return []


def block(role, b, base, pre=(), post=(), fast=()):
    w = ["s_waitcnt lgkmcnt(0)"]
    d = list(pre) + D(b + 1, base) + list(post)
    f = F(b) + list(fast)
    if role == "A":
        k = 1 if pre else 0
        return ["s_setprio 2"] + w + S(b) + d[:k] + ["s_setprio 0"] + d[k:] + f
    return w + d + ["s_setprio 1"] + S(b) + ["s_setprio 3"] + f


def mlp_head(grp, role):
    o = ["s_setprio %d" % {"A": 0, "B": 3}[role], f"s_mov_b32 s{ITER}, 0", f"s_mov_b32 s{XK}, {kflag(6)}",
         f"v_mov_b32 v{PV}, 7"] + flag_read(FV, False) + F(-1)
    o += block(role, 0, 0, pre=recheck(f"L_pollE{grp}", 6, FV, False),
               post=wpiece(grp, 0) + wpiece(grp, 1) + flag_read(FV))
    o += block(role, 1, 0, pre=recheck(f"L_pollL{grp}", 6, FV), post=wpiece(grp, 2) + flag_read(FV, False))
    o += stamp("head")
    return o


def mlp_loop(grp, role):
    def dma(k):
        return [f"s_cmp_gt_u32 s{ITER}, 2", f"s_cbranch_scc1 L_nodma{grp}{k}"] + wpiece(grp, k) + [f"L_nodma{grp}{k}:"]
    o = ([f".p2align {OPT['al']}"] if OPT["al"] else []) + ["s_nop 0"] * OPT["shift"] + [f"L_loop{grp}:"]
    o += block(role, 2, 0, pre=recheck(f"L_pollW1{grp}", f"s{XK}", FV, False),
               post=["s_waitcnt vmcnt(0)", f"ds_write_b8 v{FLW}, v{PV}"] + dma(0))
    o += block(role, 3, 0, post=dma(1)) + block(role, 4, 0, post=dma(2) + flag_read(FV))
    o += block(role, 5, 0, pre=recheck(f"L_pollW2{grp}", f"s{XK}", FV),
               post=flag_read(FV, False) + [f"s_sub_u32 s{XK}, s{XK}, 0x01010101", f"s_add_u32 s{ITER}, s{ITER}, 1"])
    o += [f"v_add_u32 v{AW1}, {PAIR}, v{AW1}", f"v_add_u32 v{AW2}, {PAIR}, v{AW2}", f"v_add_u32 v{ABI}, 0x100, v{ABI}",
          f"v_add_u32 v{PV}, 1, v{PV}", f"s_cmp_lt_u32 s{ITER}, 5", f"s_cbranch_scc1 L_loop{grp}"]
    return o


XF = [BIAS, BIAS + 8, BOP, BOP + 8, BOP + 16, TMP + 8]
GAM = [ACC1, ACC1 + 8, TMP, W2F, TR, TMP + 16]


def gam_reads(cis):
    return [f"ds_read_b128 {vr(GAM[ci] + 4 * t, 4)}, v{AGAM} offset:{GAMOFF + 64 * ci + 16 * t}" for ci in cis for t in range(2)]


def mlp_tail(grp, role):
    hi = [f"v_and_b32 v{XF[ci] + 2 * j + 1}, 0xffff0000, v{XRES + 4 * ci + j}" for ci in range(6) for j in range(4)]
    o = stamp("loop") + block(role, 22, 5)
    o += block(role, 23, 5, post=gam_reads([2, 3, 5]), fast=hi[:16])
    o += block(role, 24, 5, post=gam_reads([0, 1, 4]),
               fast=hi[16:] + [f"v_xor_b32 v{XRA}, 32, v{OW}"])
    return o


def epilogue():
    lo = [f"v_lshlrev_b32 v{XF[ci] + 2 * j}, 16, v{XRES + 4 * ci + j}" for ci in range(6) for j in range(4)]
    o = ([f"s_setprio {OPT['eprio']}"] if OPT["eprio"] >= 0 else []) + ["s_waitcnt lgkmcnt(0)"] + S(25, lo)
    o += stamp("mlp")
    o += [f"s_mul_i32 s{SB}, s{WAVE}, 6144"]
    o += stamp("poll")
    for ci in range(6):
        o += [f"v_fmac_f32 v{XF[ci] + j}, v{ACC2 + 8 * ci + j}, v{GAM[ci] + j}" for j in range(8)]
        o += [f"v_cvt_pk_bf16_f32 v{XRES + 4 * ci + j}, v{XF[ci] + 2 * j}, v{XF[ci] + 2 * j + 1}" for j in range(4)]
        o += [f"ds_write_b128 v{XRA if ci % 2 else OW}, {vr(XRES + 4 * ci, 4)} offset:{64 * (ci // 2)}"]
    o += [f"v_add_u32 v{WV2}, s{SB}, v{WV2}", f"s_add_u32 s{SA}, s{OBASE}, {ROWB}"]
    o += stamp("lds", True)
    for k in range(6):
        o += [f"ds_read_b128 {vr(ACC1 + 4 * k, 4)}, v{WV2} offset:{1024 * k}"]
    for k in range(6):
        o += [f"s_waitcnt lgkmcnt({5 - k})",
              f"buffer_store_dwordx4 {vr(ACC1 + 4 * k, 4)}, v{GO + k % 3}, s[{SO}:{SO + 3}], s{OBASE if k < 3 else SA} offen {OPT['snt']}"]
    if OPT["stamps"]:
        o += stamp("issued_st") + ["s_waitcnt vmcnt(0)"] + stamp("end")
        o += ["s_memrealtime s[96:97]", "s_getreg_b32 s98, hwreg(HW_REG_HW_ID)", "s_waitcnt lgkmcnt(0)",
              f"s_lshl_b32 s{SA}, s2, 3", f"s_add_u32 s{SA}, s{SA}, s{WAVE}", f"s_lshl_b32 s{SA}, s{SA}, 6",
              f"v_mov_b32 v1, s{SA}"]
        n = nstamp[0]
        for i in range(n):
            o += [f"v_mov_b32 v{16 + i}, s{STAMP + 2 * i}"]
        o += [f"v_mov_b32 v{16 + i}, 0" for i in range(n, 13)]
        o += ["v_mov_b32 v29, s100", "v_mov_b32 v30, s96", "v_mov_b32 v31, s98"]
        o += [f"global_store_dwordx4 v1, {vr(16 + 4 * i, 4)}, s[20:21] offset:{16 * i}" for i in range(4)]
    return o


def main():
    segs = {}
    segs["setup"] = setup()
    segs["issueE"] = issue_e()
    segs["issueL"] = issue_l()
    segs["addr"] = addresses()
    segs["fragsE"] = frags("E")
    segs["fragsL"] = frags("L")
    segs["preE"] = pre_e()
    segs["preL"] = pre_l()
    segs["convE"] = conv("E")
    segs["convL"] = conv("L")
    segs["lnE"] = layernorm("E")
    segs["lnL"] = layernorm("L")
    roles = {"E": OPT["roles"][0], "L": OPT["roles"][1]}
    for g in "EL":
        segs["head" + g] = mlp_head(g, roles[g])
        segs["loop" + g] = mlp_loop(g, roles[g])
        segs["tail" + g] = mlp_tail(g, roles[g])
    segs["tailE"] += ["s_branch L_epi"]
    segs["epi"] = ["L_epi:"] + epilogue()
    traces = {
        "E": ["setup", "issueE", "addr", "fragsE", "preE", "convE", "lnE"],
        "L": ["setup", "issueL", "addr", "fragsL", "preL", "convL", "lnL"]}
    for g in "EL":
        traces[g] += ["head" + g, "loop" + g, "loop" + g, "tail" + g, "epi"]
    fix(segs, traces, verbose=bool(OPT.get("v")), lax=OPT["stamps"] and OPT["set"] == "cv")
    ref = open(f"cdna_kernels/{KN}.s.ref").read().split("\n")
    head = [l for l in ref if l.startswith(";") and "@launch" not in l]
    order = ["setup", "issueE", "addr", "fragsE", "preE", "convE", "lnE", "headE", "loopE", "tailE",
             "issueL", "fragsL", "preL", "convL", "lnL", "headL", "loopL", "tailL", "epi"]
    out = head + [f"; @launch grid=(200,1,1) block=(512,1,1) lds={LDS_BYTES}",
                  '.amdgcn_target "amdgcn-amd-amdhsa--gfx950"', ".text", f".globl {KN}_kernel", ".p2align 8",
                  f".type {KN}_kernel,@function", f"{KN}_kernel:"]
    for s in order:
        out += [f"; ---- {s}"] + [l if l.endswith(":") or l.startswith(".") else "    " + l.rstrip() for l in segs[s]]
    out += ["L_end:", "    s_endpgm", "L_codeend:",
            '.section .rodata,"a"', ".p2align 6", f".amdhsa_kernel {KN}_kernel",
            "  .amdhsa_next_free_vgpr 256", "  .amdhsa_next_free_sgpr 102", "  .amdhsa_accum_offset 256",
            "  .amdhsa_group_segment_fixed_size 0", "  .amdhsa_kernarg_size 80", "  .amdhsa_user_sgpr_count 2",
            "  .amdhsa_user_sgpr_kernarg_segment_ptr 1", "  .amdhsa_system_sgpr_workgroup_id_x 1",
            ".end_amdhsa_kernel"]
    open(sys.argv[1], "w").write("\n".join(out) + "\n")
    if OPT["stamps"]:
        open(sys.argv[1] + ".stamps", "w").write(" ".join(STAMPS))


if __name__ == "__main__":
    main()
```

```python
import math
import struct
import sys

from hazard import fix

KN = "standalone__modern_conv_block_convnext__vision"
OPT = dict(xnt="nt", snt="sc1", stamps=0, pf=1, roles="AB", set="all", al=0, shift=0, pairw=5, up=16, w0first=1, eprio=1, lconv=3, eln=2, xin=1, win=1, prerows=0, midrows=4, bf=3, sig3=34)
for a in sys.argv[2:]:
    k, v = a.split("=")
    OPT[k] = int(v) if v.lstrip("-").isdigit() else v


def f32(x):
    return "0x%08x" % struct.unpack("<I", struct.pack("<f", x))[0]


LOG2E = 1.4426950408889634
K1 = 2.0 * math.sqrt(2.0 / math.pi)
BETA = -((LOG2E * K1 * 0.044715) ** (1.0 / 3.0))
CGELU = LOG2E * K1 / -BETA

PAIR = 24576
XIMG = 3 * PAIR
DWT = XIMG + 76800
TAB = DWT + 8192
FL = TAB + 4096
LDS_BYTES = FL + 64
B2OFF, GAMOFF = 2048, 3072
XB = 224 * 224 * 192
ROWB = 224 * 192
BIG = 0x20000000

LANE, XV, WV1, IDX, AW1, AW2, ABI, XRA, OW, WV2, GO, AGAM, FLW, FLR = 0, 1, 2, 3, 4, 5, 6, 7, 8, 9, 10, 13, 14, 15
CACC, AF, BB, CP, EXW, EXR, FLG, DVAL, DHOT = 16, 64, 124, 244, 247, 248, 249, 250, 251
ACC2, ACC1, BOP, W1F, W2F, GR, TR, BIAS, XRES, TMP = 16, 64, 96, 120, 144, 168, 176, 192, 208, 232
SX, SDW, SW1, SW2, ST, SO = 24, 28, 32, 36, 16, 40
P_B1, P_B2, P_GA = 4, 6, 8
WAVE, KQ, TY, TX, SROW, SM0, SA, SB, SC, OBASE, WG2, XK, WG1, WM0, ITER, SCALE = range(48, 64)
STAMP = 64
nstamp = [0]


def stamp(name, drain=False, same=False):
    if not OPT["stamps"] or name not in STAMPSETS[OPT["set"]]:
        return []
    same = name in STAMPS
    if drain and OPT["set"] != "cv":
        return stamp(name) + ["s_waitcnt lgkmcnt(0)"]
    if same:
        n = STAMPS.index(name)
    else:
        n = nstamp[0]
        nstamp[0] += 1
        STAMPS.append(name)
    ins = "s_memrealtime" if OPT["stamps"] == 2 else "s_memtime"
    return [f"{ins} s[{STAMP + 2 * n}:{STAMP + 2 * n + 1}]"]


STAMPS = []
STAMPSETS = {
    "all": "start karg issued dw frags x conv ln mlp issued_st end".split(),
    "pro": "start karg issued addr landed tab dw frags x conv stats ln end".split(),
    "cv": "start x c0 c1 c2 conv sig stats l0 l1 l2 ln end".split(),
    "m2": "start x conv ln head loop mlp poll lds issued_st end".split(),
    "mlp": "start ln head it0 it1 it2 it3 it4 mlp poll lds issued_st end".split(),
}


def vr(b, n):
    return f"v[{b}:{b + n - 1}]"


def srd(base, size):
    return [f"s_mov_b32 s{base + 2}, {size}", f"s_mov_b32 s{base + 3}, 0x20000"]


def poll(name, ka=None, kb=None, tmp=None, addr=FLR):
    def chk(reg, k):
        k = k if isinstance(k, str) else hex((0x80 - k) * 0x01010101)
        return [f"v_readfirstlane_b32 s{SA}, v{reg}", f"s_add_u32 s{SA}, s{SA}, {k}",
                f"s_andn2_b32 s{SA}, 0x80808080, s{SA}", f"s_cbranch_scc1 {name}"]
    if ka is not None and kb is not None:
        return [f"{name}:", f"ds_read_b64 {vr(tmp, 2)}, v{FLR}", "s_waitcnt lgkmcnt(0)"] + chk(tmp, ka) + chk(tmp + 1, kb)
    off = 0 if kb is None else 4
    return [f"{name}:", f"ds_read_b32 v{tmp}, v{addr} offset:{off}", "s_waitcnt lgkmcnt(0)"] + chk(tmp, kb if off else ka)


def recheck(name, k, tmp, late=True, addr=FLR):
    kk = k if isinstance(k, str) else hex((0x80 - k) * 0x01010101)
    return [f"v_readfirstlane_b32 s{SA}, v{tmp}", f"s_add_u32 s{SA}, s{SA}, {kk}",
            f"s_andn2_b32 s{SA}, 0x80808080, s{SA}", f"s_cbranch_scc0 {name}_ok"] + (
                poll(name, None, k, tmp) if late else poll(name, k, None, tmp, addr)) + [f"{name}_ok:"]


def flag_read(tmp, late=True):
    return [f"ds_read_b32 v{tmp}, v{FLR} offset:{4 if late else 0}"]


def signal(stage, tmp):
    return [f"v_mov_b32 v{tmp}, {stage}", f"ds_write_b8 v{FLW}, v{tmp}"]


def kflag(k):
    return hex((0x80 - k) * 0x01010101)


def flag_reset():
    return [f"v_mov_b32 v{FLR}, {FL}", f"v_mov_b32 v{IDX}, 0", f"v_add_u32 v{FLW}, s{WAVE}, v{FLR}",
            f"ds_write_b8 v{FLW}, v{IDX}"]


def setup():
    o = stamp("start")
    o += [f"s_load_dwordx2 s[{SX}:{SX + 1}], s[0:1], 0",
          f"v_readfirstlane_b32 s{WAVE}, v0",
          f"s_and_b32 s{SA}, s2, 7", f"s_lshr_b32 s{SB}, s2, 3", f"s_mul_i32 s{SA}, s{SA}, 25",
          f"s_cmp_ge_u32 s{SB}, 25", "s_cbranch_scc1 L_end",
          f"s_add_u32 s{SA}, s{SA}, s{SB}",
          f"s_cmp_ge_u32 s{SA}, 196", "s_cbranch_scc1 L_end",
          f"s_lshr_b32 s{WAVE}, s{WAVE}, 6",
          f"v_and_b32 v{LANE}, 63, v0",
          f"s_mul_hi_u32 s{TY}, s{SA}, 0x12492493",
          f"s_and_b32 s{KQ}, s{WAVE}, 3",
          f"s_mul_i32 s{SB}, s{TY}, 14", f"s_sub_u32 s{TX}, s{SA}, s{SB}",
          f"s_cmp_lt_u32 s{WAVE}, 4", "s_cbranch_scc0 L_issueL"]
    return o


def more_args():
    o = [f"s_load_dwordx2 s[{SW1}:{SW1 + 1}], s[0:1], 16",
         f"s_load_dwordx2 s[{SW2}:{SW2 + 1}], s[0:1], 32",
         f"s_load_dwordx2 s[{SO}:{SO + 1}], s[0:1], 56"]
    if OPT["stamps"]:
        o += ["s_load_dwordx2 s[20:21], s[0:1], 72", "s_memrealtime s[100:101]"]
    return o


def xrow(r):
    return [f"s_add_u32 m0, s{SM0}, {3840 * r}", f"s_add_u32 s{SA}, s{SROW}, {ROWB * r}",
            f"buffer_load_dwordx4 v{XV}, s[{SX}:{SX + 3}], s{SA} offen {OPT['xnt']} lds"]


AP, MASK, PFV, SETT, PP = BB, BB + 4, BB + 16, BB + 18, BB + 32
PAF, PBB, PCP = 28, 220, 252
PMASK, TABV, PSET = PBB + 4, PBB + 8, PBB + 16


def xaddr_dma(a):
    b, c = a + 1, a + 2
    o = [f"v_mul_u32_u24 v{a}, 43, v{LANE}", f"s_mul_i32 s{SB}, s{KQ}, 5", f"v_lshrrev_b32 v{a}, 9, v{a}",
         f"v_mul_u32_u24 v{b}, 12, v{a}", f"v_add_u32 v{a}, s{SB}, v{a}", f"v_sub_u32 v{b}, v{LANE}, v{b}",
         f"s_lshl_b32 s{SB}, s{TX}, 4", f"v_bfe_u32 v{c}, v{a}, 2, 2", f"s_sub_u32 s{SB}, s{SB}, 2",
         f"v_xor_b32 v{b}, v{b}, v{c}", f"v_add_u32 v{a}, s{SB}, v{a}",
         f"v_min_u32 v{a}, 0xe0, v{a}", f"v_add_u32 v{c}, 32, v{a}", f"v_lshrrev_b32 v{c}, 8, v{c}",
         f"v_mul_u32_u24 v{a}, 0xc0, v{a}", f"v_lshl_add_u32 v{a}, v{b}, 4, v{a}",
         f"v_lshl_add_u32 v{XV}, v{c}, 29, v{a}",
         f"s_mul_i32 s{SROW}, s{TY}, {16 * ROWB}", f"s_sub_u32 s{SROW}, s{SROW}, {2 * ROWB}",
         f"s_mul_i32 s{SM0}, s{KQ}, 960", f"s_add_u32 s{SM0}, s{SM0}, {XIMG}"]
    return o + srd(SX, XB)


M60, MFULL = ["s_bfm_b64 exec, 60, 0"], ["s_mov_b64 exec, -1"]


def issue_e():
    a, b = PSET + 3, PSET + 4
    o = ["s_setprio 3", f"s_load_dwordx2 s[{SDW}:{SDW + 1}], s[0:1], 8",
         f"s_load_dwordx2 s[{P_B1}:{P_B1 + 1}], s[0:1], 24",
         f"s_load_dwordx2 s[{P_B2}:{P_B2 + 1}], s[0:1], 40",
         f"s_load_dwordx2 s[{P_GA}:{P_GA + 1}], s[0:1], 48",
         f"v_lshlrev_b32 v{WV2}, 4, v{LANE}",
         f"s_lshl_b32 s{SB}, s{KQ}, 11", f"s_sub_u32 s{SC}, s{SB}, 960", f"v_add_u32 v{a}, s{SC}, v{WV2}",
         f"v_add_u32 v{b}, 0x400, v{a}", f"s_add_u32 m0, s{SB}, {DWT}"] + srd(SDW, 4800) + xaddr_dma(PSET)
    o += [f"s_mov_b32 s{ST + 3}, 0x20000",
          f"s_cmp_lt_u32 s{KQ}, 2", f"s_movk_i32 s{ST + 2}, 192", f"s_cmov_b32 s{ST + 2}, 768",
          f"s_cselect_b32 s{SC}, s{KQ}, 0", f"s_lshl_b32 s{SC}, s{SC}, 9",
          f"v_lshl_add_u32 v{TABV + 2}, v{LANE}, 3, s{SC}",
          f"s_cmp_eq_u32 s{TY}, 0", f"s_cselect_b32 s{SB}, {BIG}, s{SROW}", "s_waitcnt lgkmcnt(0)"] + stamp("karg")
    o += [f"buffer_load_dwordx4 v{a}, s[{SDW}:{SDW + 3}], 0 offen lds",
          f"s_add_u32 m0, m0, 0x400",
          f"s_cmp_eq_u32 s{KQ}, 2", f"s_cselect_b64 s[{ST}:{ST + 1}], s[{P_B2}:{P_B2 + 1}], s[{P_B1}:{P_B1 + 1}]",
          f"buffer_load_dwordx4 v{b}, s[{SDW}:{SDW + 3}], 0 offen lds",
          f"s_cmp_eq_u32 s{KQ}, 3", f"s_cselect_b64 s[{ST}:{ST + 1}], s[{P_GA}:{P_GA + 1}], s[{ST}:{ST + 1}]",
          f"s_mov_b32 s{SCALE}, {f32(BETA)}", f"s_cmov_b32 s{SCALE}, {f32(1.0 / BETA)}",
          f"s_mov_b32 m0, s{SM0}",
          f"buffer_load_dwordx2 {vr(TABV, 2)}, v{TABV + 2}, s[{ST}:{ST + 3}], 0 offen"] + M60
    o += [f"buffer_load_dwordx4 v{XV}, s[{SX}:{SX + 3}], s{SB} offen {OPT['xnt']} lds",
          f"s_add_u32 m0, s{SM0}, 3840", f"s_add_u32 s{SB}, s{SB}, {ROWB}",
          f"buffer_load_dwordx4 v{XV}, s[{SX}:{SX + 3}], s{SB} offen {OPT['xnt']} lds"] + more_args()
    for r in range(2, 12):
        o += xrow(r)
    o += MFULL + flag_reset()
    return o


def issue_l():
    o = ["L_issueL:"] + more_args() + [f"v_lshlrev_b32 v{WV2}, 4, v{LANE}"] + xaddr_dma(SETT)
    o += flag_reset() + stamp("karg")
    return o


def wpiece(grp, k):
    if grp == "E":
        o = [f"s_add_u32 m0, s{WM0}, {1024 * k}", f"s_add_u32 s{SA}, s{WG1}, {6144 * k}",
             f"buffer_load_dwordx4 v{WV1}, s[{SW1}:{SW1 + 3}], s{SA} offen lds"]
        return o + [f"s_add_u32 s{WM0}, s{WM0}, {PAIR}", f"s_add_u32 s{WG1}, s{WG1}, 128"] * (k == 2)
    o = [f"s_mov_b32 m0, s{WM0}", f"s_add_u32 s{WM0}, s{WM0}, {PAIR}"] * (k == 0)
    o += [f"buffer_load_dwordx4 v{WV2}, s[{SW2}:{SW2 + 3}], s{WG2} offen offset:{1024 * k} lds"]
    return o + [f"s_add_u32 s{WG2}, s{WG2}, 12288"] * (k == 2)


def wdma(pairs, w1=True, w2=True):
    o = []
    for p in pairs:
        for i in range(3 * w1):
            o += [f"s_add_u32 m0, s{WM0}, {PAIR * p + 1024 * i}", f"s_add_u32 s{SA}, s{WG1}, {128 * p + 6144 * i}",
                  f"buffer_load_dwordx4 v{WV1}, s[{SW1}:{SW1 + 3}], s{SA} offen lds"]
        if not w2:
            continue
        o += [f"s_add_u32 m0, s{WM0}, {PAIR * p + 12288}", f"s_add_u32 s{SA}, s{WM0}, {12288 * p}"]
        o += [f"buffer_load_dwordx4 v{WV2}, s[{SW2}:{SW2 + 3}], s{SA} offen offset:{1024 * i} lds" for i in range(3)]
    return o


def addresses(grp):
    o = stamp("issued")
    E = grp == "E"
    n, g, hf, s, rho, c, t, u, w = ((PSET if E else SETT) + 5 + i for i in range(9))
    ap, mask, cp = (PBB, PMASK, PCP) if E else (AP, MASK, CP)
    o += [f"v_and_b32 v{n}, 15, v{LANE}", f"v_lshrrev_b32 v{g}, 4, v{LANE}", f"v_lshrrev_b32 v{hf}, 5, v{LANE}",
          f"v_and_b32 v{s}, 1, v{g}", f"v_bfe_u32 v{rho}, v{LANE}, 2, 2", f"v_and_b32 v{c}, 3, v{LANE}"]
    o += [f"v_bfe_u32 v{t}, v{LANE}, 2, 3", f"v_mul_u32_u24 v{t}, 0x300, v{t}",
          f"v_lshl_add_u32 v{t}, v{hf}, 6, v{t}", f"v_lshl_add_u32 v{WV1}, v{c}, 4, v{t}",
          f"s_mul_i32 s{WM0}, s{KQ}, 3072", f"s_mul_i32 s{WG1}, s{KQ}, 18432"]
    o += srd(SW1, 73728) + srd(SW2, 73728) * (not E) + srd(SO, XB)
    o += [f"v_mul_u32_u24 v{IDX}, 0x5555, v{c}"]
    o += [f"v_and_b32 v{t}, 2, v{c}", f"v_and_b32 v{u}, 1, v{c}", f"v_mul_u32_u24 v{u}, 960, v{u}",
          f"v_lshlrev_b32 v{t}, 2, v{t}", f"v_lshl_add_u32 v{t}, v{rho}, {4 if E else 6}, v{t}",
          f"v_sub_u32 v{t}, v{t}, v{u}"]
    if E:
        o += [f"v_add_u32 v{t}, {DWT + 960}, v{t}"]
        tabs = [[0, 2, 10, 12], [20, 22, 1, 3], [11, 13, 21, 23], [4, 14, 24, 30]]
    else:
        o += [f"s_lshl_b32 s{SA}, s{KQ}, 4", f"s_add_u32 s{SA}, s{SA}, {DWT + 960}", f"v_add_u32 v{t}, s{SA}, v{t}"]
        tabs = [[0, 2, 1, 3], [4, 14, 24, 30], [30, 4, 14, 24]]
    o += [f"v_lshlrev_b32 v{w}, 3, v{g}", f"s_movk_i32 s{SB}, 0xc0"]
    for q, tab in enumerate(tabs):
        cst = sum(v << (8 * i) for i, v in enumerate(tab))
        o += [f"s_mov_b32 s{SA}, {cst}", f"v_bfe_u32 v{ap + q}, s{SA}, v{w}, 8",
              f"v_mad_u32_u24 v{ap + q}, v{ap + q}, s{SB}, v{t}"]
    o += [f"v_bfe_i32 v{t}, v{LANE}, 3, 1", f"v_lshrrev_b32 v{mask + 2}, 16, v{t}",
          f"v_and_b32 v{mask + 3}, 0xffff0000, v{t}", f"v_xor_b32 v{mask}, 0xffff, v{mask + 2}",
          f"v_xor_b32 v{mask + 1}, 0xffff0000, v{mask + 3}"]

    def xaddr(dst, col, row, extra):
        return ([f"v_bfe_u32 v{t}, v{col}, 2, 2"] + [f"v_xor_b32 v{t}, {extra}, v{t}"] * bool(extra)
                + [f"v_mul_u32_u24 v{u}, 0xc0, v{col}", f"v_lshl_add_u32 v{t}, v{t}, 4, v{u}",
                   f"v_mul_u32_u24 v{u}, 0xf00, v{row}", f"v_add3_u32 v{dst}, v{t}, v{u}, s{SB}"])
    swz = "" if E else f"s{KQ}"
    o += [f"s_mul_i32 s{SB}, s{KQ}, 7680", f"s_add_u32 s{SB}, s{SB}, {XIMG}"] if E else [f"s_mov_b32 s{SB}, {XIMG + 30720}"]
    o += [f"v_lshl_add_u32 v{w}, v{hf}, 1, v{n}"] + xaddr(cp, w, s, swz)
    o += [f"v_add_u32 v{w}, 1, v{w}"] + xaddr(cp + 1, w, s, swz)
    o += [f"v_add_u32 v{w}, 4, v{n}"] + xaddr(cp + 2, w, g, swz)
    if E:
        o += [f"v_mul_u32_u24 v{u}, 7680, v{hf}", f"v_sub_u32 v{u}, v{cp + 2}, v{u}", f"v_add_u32 v{cp + 3}, 15360, v{u}"]
    o += [f"s_mul_i32 s{SB}, s{WAVE}, 7680", f"s_add_u32 s{SB}, s{SB}, {XIMG + 7680}",
          f"v_add_u32 v{w}, 2, v{n}"] + xaddr(XRA, w, s, f"v{hf}")
    if not E:
        o += [f"s_lshl_b32 s{SA}, s{KQ}, 9", f"s_add_u32 s{SA}, s{SA}, {XIMG}", f"v_lshl_add_u32 v{EXW}, v{LANE}, 3, s{SA}",
              f"s_mul_i32 s{SA}, s{KQ}, 5632", f"v_add_u32 v{EXR}, s{SA}, v{EXW}"]
        o += [f"v_and_b32 v{t}, 1, v{c}", f"v_lshlrev_b32 v{t}, 4, v{t}", f"s_movk_i32 s{SA}, 0x3f80",
              f"v_lshlrev_b32_e64 v{DVAL}, v{t}, s{SA}",
              f"v_xor_b32 v{t}, v{rho}, v{hf}", f"v_and_b32 v{t}, 1, v{t}", f"v_xor_b32 v{t}, 1, v{t}",
              f"v_bfe_u32 v{u}, v{LANE}, 3, 2", f"v_lshrrev_b32 v{w}, 1, v{c}", f"v_lshl_add_u32 v{u}, v{u}, 1, v{w}",
              f"v_lshlrev_b32 v{DHOT}, v{u}, v{t}"]
    o += [f"v_lshl_add_u32 v{t}, v{hf}, 2, v{rho}", f"v_lshlrev_b32 v{u}, 5, v{s}",
          f"v_lshl_add_u32 v{w}, v{c}, 3, v{u}", f"v_lshl_add_u32 v{AW1}, v{t}, 6, v{w}",
          f"v_mul_u32_u24 v{t}, 0xc0, v{t}", f"v_and_b32 v{w}, 1, v{c}", f"v_lshl_add_u32 v{u}, v{w}, 4, v{u}",
          f"v_lshrrev_b32 v{w}, 1, v{c}", f"v_lshl_add_u32 v{u}, v{w}, 3, v{u}", f"v_add_u32 v{AW2}, v{t}, v{u}",
          f"v_lshlrev_b32 v{t}, 4, v{hf}", f"v_add_u32 v{ABI}, {TAB}, v{t}",
          f"v_add_u32 v{AGAM}, v{ABI}, v{t}"]
    o += [f"s_mul_i32 s{SB}, s{WAVE}, 6144",
          f"v_bfe_u32 v{t}, v{n}, 1, 2", f"v_xor_b32 v{t}, v{t}, v{hf}", f"v_and_b32 v{u}, 31, v{LANE}",
          f"v_mul_u32_u24 v{u}, 0xc0, v{u}", f"v_lshl_add_u32 v{t}, v{t}, 4, v{u}", f"v_add_u32 v{OW}, s{SB}, v{t}"]
    for k in range(3):
        o += [f"v_add_u32 v{t}, {64 * k}, v{LANE}", f"v_mul_u32_u24 v{u}, 171, v{t}",
              f"v_bfe_u32 v{u}, v{u}, 12, 2", f"v_xor_b32 v{t}, v{t}, v{u}", f"v_lshlrev_b32 v{GO + k}, 4, v{t}"]
    o += [f"s_lshl_b32 s{SA}, s{TY}, 4", f"s_lshl_b32 s{SB}, s{WAVE}, 1", f"s_add_u32 s{SA}, s{SA}, s{SB}",
          f"s_mul_i32 s{SA}, s{SA}, {ROWB}", f"s_mul_i32 s{SB}, s{TX}, 3072", f"s_add_u32 s{OBASE}, s{SA}, s{SB}"]
    o += [f"v_mov_b32 v{CACC + i}, 0" for i in range(12 if E else 48)]
    o += stamp("addr")
    return o


def paf(b, ac, q):
    return PAF + 48 * b + 16 * ac + 4 * q


def frags_e():
    o = ["s_waitcnt vmcnt(13) lgkmcnt(0)", "s_barrier"] + stamp("dw", True)
    items = [(ac, q, pp) for ac in range(3) for q in range(4) for pp in range(2)]

    def rd(k):
        ac, q, pp = items[k]
        return [f"ds_read_b64_tr_b16 {vr(paf(3, ac, q) + 2 * pp, 2)}, v{PBB + q} offset:{960 * pp + 64 * ac}"]
    for k in range(12):
        o += rd(k)
    for k, (ac, q, pp) in enumerate(items):
        if k % 4 == 0:
            o += [f"s_waitcnt lgkmcnt({min(8, 20 - k)})"]
            for kk in range(k + 12, min(k + 16, 24)):
                o += rd(kk)
        p = paf(3, ac, q) + 2 * pp
        for b in range(4):
            for g in range(2):
                o += [f"v_and_b32 v{paf(b, ac, q) + 2 * pp + g}, v{p + b // 2}, v{PMASK + 2 * g + b % 2}"]
    return o + stamp("frags")


def af(a, f):
    return AF + 20 * a + 4 * f


def frags_l():
    pre, mid = OPT["prerows"], OPT["midrows"]
    o = ["s_waitcnt lgkmcnt(0)"]
    if OPT["pf"]:
        o += ["s_cmp_ge_u32 s2, 8", "s_cbranch_scc1 L_nopf",
              "s_getpc_b64 s[14:15]", "L_pc:", f"s_lshl_b32 s{SB}, s{KQ}, 13",
              f"v_lshl_add_u32 v{SETT}, v{LANE}, 7, s{SB}",
              f"v_min_u32 v{SETT}, L_codeend-L_convE-4, v{SETT}", "s_sub_u32 s14, s14, L_pc-L_convE",
              "s_subb_u32 s15, s15, 0", f"global_load_dword v{PFV}, v{SETT}, s[14:15]", "L_nopf:"]
    if pre:
        o += M60 + sum((xrow(r) for r in range(12, 12 + pre)), []) + MFULL
    o += ["s_barrier"] + stamp("dw", True)
    for f in range(5):
        for pp in range(2):
            o += [f"ds_read_b64_tr_b16 {vr(PP + 4 * f + 2 * pp, 2)}, v{AP + max(f - 2, 0)} "
                  f"offset:{960 * pp + (1920 * f if f < 3 else 0)}"]
    o += M60 + sum((xrow(r) for r in range(12 + pre, 12 + mid)), []) + MFULL
    for f in range(5):
        o += [f"s_waitcnt lgkmcnt({8 - 2 * f})"]
        for pp in range(2):
            for a in range(3):
                for g in range(2):
                    o += [f"v_and_b32 v{af(a, f) + 2 * pp + g}, v{PP + 4 * f + 2 * pp + a // 2}, v{MASK + 2 * g + a % 2}"]
    o += stamp("frags")
    return o


def pre_l():
    o = ["s_barrier"] + M60 + sum((xrow(r) for r in range(12 + OPT["midrows"], 20)), []) + MFULL
    o += wdma([0], w1=False) + wdma([1]) + stamp("tab")
    o += [f"s_add_u32 s{WG2}, s{WM0}, {2 * 12288}", f"s_add_u32 s{WM0}, s{WM0}, {2 * PAIR + 12288}"]
    o += ["s_waitcnt vmcnt(9)", "s_setprio 3"] + signal(2, SETT)
    return o + poll("L_pollRows", None, 2, SETT + 1) + [f"s_setprio {OPT['lconv']}"]


def pre_e():
    a = TABV
    o = wdma([0], w2=False)
    o += [f"s_lshl_b32 s{SA}, s{KQ}, 10", f"s_add_u32 s{SA}, s{SA}, {TAB}", f"v_add_u32 v{a + 2}, s{SA}, v{WV2}",
          "s_waitcnt vmcnt(15)",
          f"v_lshlrev_b32 v{a + 4}, 16, v{a}", f"v_and_b32 v{a + 5}, 0xffff0000, v{a}",
          f"v_lshlrev_b32 v{a + 6}, 16, v{a + 1}", f"v_and_b32 v{a + 7}, 0xffff0000, v{a + 1}"]
    o += [f"v_mul_f32 v{a + 4 + i}, s{SCALE}, v{a + 4 + i}" for i in range(4)]
    o += [f"ds_write_b128 v{a + 2}, {vr(a + 4, 4)}",
          f"s_add_u32 s{WM0}, s{WM0}, {2 * PAIR}", f"s_add_u32 s{WG1}, s{WG1}, 256",
          "s_waitcnt vmcnt(3)" if OPT["sig3"] >= 0 else "s_waitcnt vmcnt(0) lgkmcnt(0)"]
    return o + stamp("tab") + ["s_barrier"]


FV, PV = LANE, IDX


class LdsQueue:
    def __init__(self):
        self.n = 0
        self.done = 0

    def issue(self, lines):
        self.n += sum(l.startswith("ds_") for l in lines)
        return lines

    def wait(self, upto):
        if upto <= self.done:
            return []
        self.done = upto
        assert self.n - upto <= 15
        return [f"s_waitcnt lgkmcnt({self.n - upto})"]


DG, NEG, SUMD = AF + 8, AF + 16, TR


def cacc(a, t):
    return CACC + 16 * a + 4 * t


LS, LQ = [PAF + 44, PAF + 45], [PAF + 46, PAF + 47]


def stats(b):
    o = []
    for j in range(12):
        v = CACC + 12 * b + j
        if b == 0 and j < 2:
            o += [f"v_add_f32 v{LS[j]}, v{v}, v{v + 2}", f"v_mul_f32 v{LQ[j]}, v{v}, v{v}"]
        elif b == 0 and j < 4:
            o += [f"v_fmac_f32 v{LQ[j % 2]}, v{v}, v{v}"]
        else:
            o += [f"v_add_f32 v{LS[j % 2]}, v{LS[j % 2]}, v{v}", f"v_fmac_f32 v{LQ[j % 2]}, v{v}, v{v}"]
    return o


def conv_e():
    o = ["L_convE:"] + stamp("x", True)
    steps = [(b, q, ac) for b in range(4) for q in range(4) for ac in range(3)]
    pool = [PBB + 8 * k for k in range(4)]
    extra = {11: [PAF + 36], 23: [PAF + 48, PAF + 56]}
    buf, mark = {}, {}
    lq = LdsQueue()

    def reads(nn):
        b, q, ac = steps[nn]
        buf[nn] = pool.pop(0)
        r = []
        for hb in range(2):
            i = 2 * q + hb
            pat, off = [(0, 7680 * i), (1, 7680 * (i - 3)), (i - 4, 0)][min(i // 3, 2)]
            if b and ac == 0 and i in (0, 3, 6, 7):
                r += [f"v_xor_b32 v{PCP + pat}, {16 * (b ^ (b - 1))}, v{PCP + pat}"]
            r += [f"ds_read_b128 {vr(buf[nn] + 4 * hb, 4)}, v{PCP + pat} offset:{off + 64 * ac}"]
        lq.issue(r)
        mark[nn] = lq.n
        return r
    issued = 0
    while pool:
        o += reads(issued)
        issued += 1
    for nn, (b, q, ac) in enumerate(steps):
        if lq.done < mark[nn]:
            o += lq.wait(mark[min(nn + (issued - nn >= 5), 47)])
        o += [f"v_smfmac_f32_16x16x64_bf16 {vr(CACC + 12 * b + 4 * ac, 4)}, {vr(paf(b, ac, q), 4)}, "
              f"{vr(buf[nn], 8)}, v{IDX}"]
        pool += [buf[nn]] + extra.get(nn, [])
        if nn == OPT["sig3"]:
            o += ["s_waitcnt vmcnt(0)"] + lq.issue(signal(3, FV))
        if nn == 40 and OPT["sig3"] >= 0:
            o += lq.issue(flag_read(FV, False))
        if nn in (11, 23, 35):
            o += stamp(f"c{nn // 12}")
        while pool and issued < 48:
            o += reads(issued)
            issued += 1
        k = 3 * q + ac
        if b == 0 and q == 3:
            o += [f"v_mov_b32 v{CACC + 12 + 4 * ac + i}, 0" for i in range(4)]
        if b in (1, 2) and k < 9:
            o += [f"v_mov_b32 v{CACC + 12 * (b + 1) + i}, 0" for i in range(12 * k // 9, 12 * (k + 1) // 9)]
        if b and k >= 2:
            st = stats(b - 1)
            o += st[len(st) * (k - 2) // 10:len(st) * (k - 1) // 10]
    return o + stamp("conv", True)


def layernorm_e():
    def cv(cg, r):
        return CACC + 12 * (cg % 4) + 4 * (cg // 4) + r
    s, q = LS, LQ
    o = (recheck("L_pollW0", 3, FV, False) if OPT["sig3"] >= 0 else []) + D(-1, 0)
    o += [f"ds_read_b128 {vr(XRES + 8 * a, 4)}, v{XRA} offset:{64 * a}" for a in range(3)]
    o += [f"v_xor_b32 v{XRA}, 32, v{XRA}"]
    o += [f"ds_read_b128 {vr(XRES + 8 * a + 4, 4)}, v{XRA} offset:{64 * a}" for a in range(3)]
    o += signal(6, PV) + stats(3)
    o += [f"v_add_f32 v{s[0]}, v{s[0]}, v{s[1]}", f"v_add_f32 v{q[0]}, v{q[0]}, v{q[1]}",
          f"v_mov_b32 v{s[1]}, v{s[0]}", f"v_mov_b32 v{q[1]}, v{q[0]}",
          f"v_mov_b32 v{GR + 4}, 0",
          f"v_permlane32_swap_b32 v{s[0]}, v{s[1]}", f"v_permlane32_swap_b32 v{q[0]}, v{q[1]}",
          f"v_add_f32 v{s[0]}, v{s[0]}, v{s[1]}", f"v_add_f32 v{q[0]}, v{q[0]}, v{q[1]}",
          f"v_mul_f32 v{s[0]}, {f32(1 / 96)}, v{s[0]}", f"v_mul_f32 v{q[0]}, {f32(1 / 96)}, v{q[0]}",
          f"v_fma_f32 v{q[0]}, -v{s[0]}, v{s[0]}, v{q[0]}", f"v_max_f32 v{q[0]}, 0, v{q[0]}",
          f"v_add_f32 v{q[0]}, {f32(1e-5)}, v{q[0]}", f"v_rsq_f32 v{TMP}, v{q[0]}",
          f"v_mov_b32 v{GR + 5}, 0", f"v_mov_b32 v{GR + 6}, 0", f"v_mov_b32 v{GR + 7}, 0",
          f"v_mul_f32 v{TMP}, {f32(BETA)}, v{TMP}", f"v_mul_f32_e64 v{TMP + 1}, -v{s[0]}, v{TMP}"] + stamp("stats")
    for kk in range(6):
        for cg in (2 * kk, 2 * kk + 1):
            o += [f"v_fma_f32 v{cv(cg, r)}, v{cv(cg, r)}, v{TMP}, v{TMP + 1}" for r in range(4)]
        if kk == 1:
            o += ["s_waitcnt lgkmcnt(0)"]
        if kk:
            o += [mf(ACC1, W1F + 4 * (kk - 1), BOP + 4 * (kk - 1), BIAS if kk == 1 else ACC1)]
        for cg in (2 * kk, 2 * kk + 1):
            o += [f"v_cvt_pk_bf16_f32 v{BOP + 2 * cg + i}, v{cv(cg, 2 * i)}, v{cv(cg, 2 * i + 1)}" for i in range(2)]
    rd = [f"ds_read_b128 {vr(ACC2 + 4 * i, 4)}, v{AGAM} offset:{B2OFF + 64 * (i // 2) + 16 * (i % 2)}" for i in range(12)]
    return o + rd[:2] + [mf(ACC1, W1F + 20, BOP + 20, ACC1)] + rd[2:] + stamp("ln")


def conv_l():
    o = stamp("x", True)
    q = LdsQueue()
    mark = {}

    def reads(a, u):
        b = BB + 60 * (a % 2)
        if u < 6:
            r = [f"ds_read_b128 {vr(b + 8 * u + 4 * h, 4)}, v{CP + h} offset:{7680 * u + 64 * a}" for h in range(2)]
        else:
            r = [f"ds_read_b128 {vr(b + 48 + 4 * j, 4)}, v{CP + 2} offset:{15360 * j + 64 * a}"
                 for j in ((0, 1) if u == 6 else (2,))]
        q.issue(r)
        mark[a, u] = q.n
        return r

    def pack(a):
        return [f"v_cvt_pk_bf16_f32 v{af(a, 0) + 2 * t + i}, v{cacc(a, t) + 2 * i}, v{cacc(a, t) + 2 * i + 1}"
                for t in range(4) for i in range(2)]

    def sm(a, t, f, b):
        return f"v_smfmac_f32_16x16x64_bf16 {vr(cacc(a, t), 4)}, {vr(af(a, f), 4)}, {vr(b, 8)}, v{IDX}"

    def put(a, t):
        return [f"ds_write_b64 v{EXW}, {vr(af(a, 0) + 2 * t, 2)} offset:{6144 * t + 2048 * a}"]
    xres = [f"ds_read_b128 {vr(XRES + 8 * a, 4)}, v{XRA} offset:{64 * a}" for a in range(3)]
    xres += [f"v_xor_b32 v{XRA}, 32, v{XRA}"]
    xres += [f"ds_read_b128 {vr(XRES + 8 * a + 4, 4)}, v{XRA} offset:{64 * a}" for a in range(3)]
    for u in range(8):
        o += reads(0, u)
    todo = [(a, u) for a in (1, 2) for u in range(8)]
    for a in range(3):
        b = BB + 60 * (a % 2)
        pk = pack(a - 1) if a else []
        for u in range(8):
            o += q.wait(mark[a, u])
            if u == 0:
                o += stamp(f"c{a}")
            if a == 1 and u == 0:
                o += ["s_waitcnt vmcnt(0)"] + q.issue(signal(3, FV + 1) + flag_read(FV, False))
            while todo and todo[0][0] <= a + 1 and q.n + 2 - q.done <= 15:
                o += reads(*todo.pop(0))
            if a == 2:
                if u == 0:
                    o += recheck("L_pollTop", 6, FV, False)
                if u >= 2:
                    o += q.issue(xres[u - 2:u - 1] if u < 5 else xres[3:5] if u == 5 else xres[u - 1:u])
                o += q.issue(put(u // 4, u % 4))
            if u < 6:
                ms = [sm(a, t, u - t, b + 8 * u) for t in range(4) if 0 <= u - t <= 2]
            else:
                ms = [sm(a, t, 3 + t % 2, b + 48 + 4 * (t // 2)) for t in ((0, 1) if u == 6 else (2, 3))]
            for m in ms:
                o += [m]
                if u >= 1:
                    o += pk[:1]
                    pk = pk[1:]
    o += stamp("conv", True)
    pk = pack(2)
    for t in range(4):
        o += pk[2 * t:2 * t + 2] + put(2, t)
    o += signal(4, TMP + 2) + stamp("sig")
    o += [f"v_bfe_i32 v{DG + i}, v{DHOT}, {i}, 1" for i in range(8)]
    o += [f"v_and_b32 v{DG + i}, v{DG + i}, v{DVAL}" for i in range(8)]
    o += [f"v_mov_b32 v{NEG + i}, 0xbf80bf80" for i in range(4)]
    o += [f"v_mov_b32 v{GR + 4 + i}, 0" for i in range(4)]
    o += [f"v_mov_b32 v{TMP + 1}, {f32(1e-5)}", f"v_mov_b32 v{PV}, 6"]
    o += ["s_setprio 3"] + poll("L_pollEx", None, 4, TMP + 4)
    o += stamp("stats", True)
    return o


def layernorm_l():
    q = [TMP + 6, TMP + 7]
    d = D(-1, 0)
    o = [f"ds_read_b64 {vr(BOP + 2 * cg, 2)}, v{EXR} offset:{512 * cg}" for cg in range(12)]


    def wide(kk):
        dst = CACC + 16 * (kk // 2)
        return f"v_mfma_f32_32x32x16_bf16 {vr(dst, 16)}, {vr(DG + 4 * (kk % 2), 4)}, {vr(BOP + 4 * kk, 4)}, {vr(dst, 16) if kk % 2 else 0}"

    def total(kk):
        return f"v_mfma_f32_32x32x16_bf16 {vr(SUMD, 16)}, {vr(NEG, 4)}, {vr(BOP + 4 * kk, 4)}, {vr(SUMD, 16) if kk else 0}"
    sq = [f"v_mul_f32 v{q[j]}, v{CACC + j}, v{CACC + j}" for j in range(2)]
    sq += [f"v_fmac_f32 v{q[j % 2]}, v{CACC + j}, v{CACC + j}" for j in range(2, 48)]
    o += ["s_waitcnt lgkmcnt(10)", wide(0), "s_waitcnt lgkmcnt(8)", wide(1), "s_waitcnt lgkmcnt(4)"] + d[:4] + [wide(2)]
    o += d[4:8] + [wide(3), "s_waitcnt lgkmcnt(8)", f"ds_write_b8 v{FLW}, v{PV}"] + d[8:11] + [wide(4)] + stamp("l0")
    o += d[11:16] + [wide(5)]
    for kk in range(6):
        o += sq[6 * kk:6 * kk + 6] + [total(kk)]
    o += sq[36:] + stamp("l1")
    o += [f"v_add_f32 v{q[0]}, v{q[0]}, v{q[1]}", f"v_mov_b32 v{q[1]}, v{q[0]}",
          f"v_mul_f32 v{SUMD}, {f32(1 / 96)}, v{SUMD}",
          f"v_permlane32_swap_b32 v{q[0]}, v{q[1]}", f"v_add_f32 v{q[0]}, v{q[0]}, v{q[1]}",
          f"v_fmamk_f32 v{q[0]}, v{q[0]}, {f32(1 / 96)}, v{TMP + 1}", f"v_fma_f32 v{q[0]}, -v{SUMD}, v{SUMD}, v{q[0]}",
          f"v_max_f32 v{q[0]}, v{TMP + 1}, v{q[0]}", f"v_rsq_f32 v{TMP}, v{q[0]}",
          "s_waitcnt lgkmcnt(0)", f"v_mul_f32 v{TMP}, {f32(BETA)}, v{TMP}",
          f"v_mul_f32 v{TMP + 1}, v{SUMD}, v{TMP}"] + stamp("l2")
    for kk in range(6):
        o += [f"v_fma_f32 v{CACC + 8 * kk + j}, v{CACC + 8 * kk + j}, v{TMP}, v{TMP + 1}" for j in range(8)]
        if kk:
            o += [mf(ACC1, W1F + 4 * (kk - 1), BOP + 4 * (kk - 1), BIAS if kk == 1 else ACC1)]
        o += [f"v_cvt_pk_bf16_f32 v{BOP + 4 * kk + i}, v{CACC + 8 * kk + 2 * i}, v{CACC + 8 * kk + 2 * i + 1}"
              for i in range(4)]
    rd = [f"ds_read_b128 {vr(ACC2 + 4 * i, 4)}, v{AGAM} offset:{B2OFF + 64 * (i // 2) + 16 * (i % 2)}" for i in range(12)]
    o += rd[:2] + [mf(ACC1, W1F + 20, BOP + 20, ACC1)] + rd[2:]
    o += stamp("ln")
    return o


def mf(d, a, b, c):
    return f"v_mfma_f32_32x32x16_bf16 {vr(d, 16)}, {vr(a, 4)}, {vr(b, 4)}, {vr(c, 16)}"


def hreg(h, i):
    return ACC1 + 16 * ((h // 2) % 2) + 8 * (h % 2) + i


def treg(h, i):
    return TR + 8 * (h % 2) + i


def greg(h):
    return GR + 4 * (h % 2)


def ok(h):
    return 0 <= h < 24


def gemm2(h, frag):
    return [mf(ACC2 + 16 * m, frag + 4 * m, greg(h), ACC2 + 16 * m) for m in range(3)]


TAILFRAG = {23: W1F, 24: W2F + 12, 25: W1F + 12}


def S(b, fill=()):
    T = [f"v_rcp_f32 v{treg(b - 1, i)}, v{treg(b - 1, i)}" for i in range(8) if ok(b - 1)]
    T += [f"v_exp_f32 v{treg(b, i)}, v{treg(b, i)}" for i in range(8) if ok(b)]
    cv = [f"v_cvt_pk_bf16_f32 v{greg(b - 2) + i}, v{hreg(b - 2, 2 * i)}, v{hreg(b - 2, 2 * i + 1)}"
          for i in range(4) if ok(b - 2)]
    ms = []
    if b % 2 and b <= 21:
        d = ACC1 + 16 * (((b + 1) // 2) % 2)
        ms = [mf(d, W1F + 4 * k, BOP + 4 * k, BIAS if k == 0 else d) for k in range(6)]
    elif b >= 23:
        ms = gemm2(b - 2, TAILFRAG[b])
    elif b % 2 == 0 and b >= 2:
        ms = gemm2(b - 3, W2F) + gemm2(b - 2, W2F + 12)
    o = list(cv)
    if b >= 23:
        T = T + list(fill)
        o += T[:2]
        T = T[2:]
        n = 6 if b == 25 else 3
        for m in ms:
            o += [m] + T[:n]
            T = T[n:]
        return o + T
    for m in ms:
        o += [m] + T[:3]
        T = T[3:]
    return o + T


def F(b):
    o = [f"v_add_f32 v{treg(b, i)}, 1.0, v{treg(b, i)}" for i in range(8) if ok(b)]
    o += [f"v_mul_f32 v{hreg(b - 1, i)}, v{hreg(b - 1, i)}, v{treg(b - 1, i)}" for i in range(8) if ok(b - 1)]
    if ok(b + 1):
        o += [f"v_fmaak_f32 v{treg(b + 1, i)}, v{hreg(b + 1, i)}, v{hreg(b + 1, i)}, {f32(CGELU)}" for i in range(8)]
        o += [f"v_mul_f32 v{treg(b + 1, i)}, v{hreg(b + 1, i)}, v{treg(b + 1, i)}" for i in range(8)]
    return o


def w2reads(h, frag, base):
    off = (h // 4 - base) * PAIR + 12288 + 3072 * (h % 4)
    return [f"ds_read_b64_tr_b16 {vr(frag + 4 * m + 2 * hf, 2)}, v{AW2} offset:{off + 1536 * hf + 64 * m}"
            for m in range(3) for hf in range(2)]


def D(b, base):
    if b % 2 and b <= 21:
        ch = (b + 1) // 2
        off = (ch // 2 - base) * PAIR + 512 * (ch % 2)
        o = [f"ds_read_b128 {vr(BIAS + 4 * k, 4)}, v{ABI} offset:{128 * ch + 32 * k}" for k in range(4)]
        return o + [f"ds_read_b64_tr_b16 {vr(W1F + 2 * k, 2)}, v{AW1} offset:{off + 1024 * k}" for k in range(12)]
    if b >= 23:
        return w2reads(b - 2, TAILFRAG[b], base) if b <= 25 else []
    if b % 2 == 0 and b >= 2:
        return (w2reads(b - 3, W2F, base) if ok(b - 3) else []) + w2reads(b - 2, W2F + 12, base)
    return []


def block(role, b, base, pre=(), post=(), fast=()):
    w = ["s_waitcnt lgkmcnt(0)"]
    d = list(pre) + D(b + 1, base) + list(post)
    f = F(b) + list(fast)
    if role == "A":
        k = 1 if pre else 0
        return ["s_setprio 2"] + w + S(b) + d[:k] + ["s_setprio 0"] + d[k:] + f
    return w + d + ["s_setprio 1"] + S(b) + ["s_setprio 3"] + f


def mlp_main(grp, role):
    first = {"E": lambda p: 4 * p - 8, "L": lambda p: max(4 * p - 10, 0) + (p == 3)}[grp]
    piece, confirm = {}, {}
    for p in range(2, 6):
        for k in range(3):
            piece.setdefault(first(p) + k, []).append(k)
        confirm[first(p) + 4] = p + 5
    need = {4 * p - 2: (False, p + 5) for p in range(2, 6)}
    need.update({4 * p + 1: (True, p + 5) for p in range(2, 6)})
    if grp == "E":
        need.update({1: (True, 3), first(3): (True, 6)})
    else:
        need.update({first(3): (True, 6)})
    o = ["s_setprio %d" % {"A": 0, "B": 3}[role], f"v_mov_b32 v{PV}, 7"] + F(-1)
    for b in range(22):
        pre = recheck(f"L_need{grp}{b}", need[b][1], FV, need[b][0]) if b in need else []
        post, fast = [], []
        if b in confirm:
            post += [f"s_waitcnt vmcnt({sum(len(v) for k, v in piece.items() if b - 2 < k < b)})", f"ds_write_b8 v{FLW}, v{PV}"]
            fast += [f"v_add_u32 v{PV}, 1, v{PV}"]
        post += sum((wpiece(grp, k) for k in piece.get(b, [])), [])
        if b + 1 in need:
            post += flag_read(FV, need[b + 1][0])
        if b in (9, 17):
            fast += [f"v_add_u32 v{AW1}, {2 * PAIR}, v{AW1}", f"v_add_u32 v{AW2}, {2 * PAIR}, v{AW2}"]
        o += block(role, b, 2 * (max(b - 2, 0) // 8), pre, post, fast)
        if b == 1:
            o += stamp("head")
    return o


XF = [BIAS, BIAS + 8, BOP, BOP + 8, BOP + 16, TMP + 8]
GAM = [ACC1, ACC1 + 8, TMP, W2F, TR, TMP + 16]


def gam_reads(cis):
    return [f"ds_read_b128 {vr(GAM[ci] + 4 * t, 4)}, v{AGAM} offset:{GAMOFF + 64 * ci + 16 * t}" for ci in cis for t in range(2)]


def mlp_tail(grp, role):
    hi = [f"v_and_b32 v{XF[ci] + 2 * j + 1}, 0xffff0000, v{XRES + 4 * ci + j}" for ci in range(6) for j in range(4)]
    o = stamp("loop") + block(role, 22, 4)
    o += block(role, 23, 4, post=gam_reads([2, 3, 5]), fast=hi[:16])
    o += block(role, 24, 4, post=gam_reads([0, 1, 4]),
               fast=hi[16:] + [f"v_xor_b32 v{XRA}, 32, v{OW}"])
    return o


def epilogue():
    lo = [f"v_lshlrev_b32 v{XF[ci] + 2 * j}, 16, v{XRES + 4 * ci + j}" for ci in range(6) for j in range(4)]
    o = ([f"s_setprio {OPT['eprio']}"] if OPT["eprio"] >= 0 else []) + ["s_waitcnt lgkmcnt(0)"] + S(25, lo)
    o += stamp("mlp")
    o += [f"s_mul_i32 s{SB}, s{WAVE}, 6144"]
    o += stamp("poll")
    for ci in range(6):
        o += [f"v_fmac_f32 v{XF[ci] + j}, v{ACC2 + 8 * ci + j}, v{GAM[ci] + j}" for j in range(8)]
        o += [f"v_cvt_pk_bf16_f32 v{XRES + 4 * ci + j}, v{XF[ci] + 2 * j}, v{XF[ci] + 2 * j + 1}" for j in range(4)]
        o += [f"ds_write_b128 v{XRA if ci % 2 else OW}, {vr(XRES + 4 * ci, 4)} offset:{64 * (ci // 2)}"]
    o += [f"v_add_u32 v{WV2}, s{SB}, v{WV2}", f"s_add_u32 s{SA}, s{OBASE}, {ROWB}"]
    o += stamp("lds", True)
    for k in range(6):
        o += [f"ds_read_b128 {vr(ACC1 + 4 * k, 4)}, v{WV2} offset:{1024 * k}"]
    for k in range(6):
        o += [f"s_waitcnt lgkmcnt({5 - k})",
              f"buffer_store_dwordx4 {vr(ACC1 + 4 * k, 4)}, v{GO + k % 3}, s[{SO}:{SO + 3}], s{OBASE if k < 3 else SA} offen {OPT['snt']}"]
    if OPT["stamps"]:
        o += stamp("issued_st") + ["s_waitcnt vmcnt(0)"] + stamp("end")
        o += ["s_memrealtime s[96:97]", "s_getreg_b32 s98, hwreg(HW_REG_HW_ID)", "s_waitcnt lgkmcnt(0)",
              f"s_lshl_b32 s{SA}, s2, 3", f"s_add_u32 s{SA}, s{SA}, s{WAVE}", f"s_lshl_b32 s{SA}, s{SA}, 6",
              f"v_mov_b32 v1, s{SA}"]
        n = nstamp[0]
        for i in range(n):
            o += [f"v_mov_b32 v{16 + i}, s{STAMP + 2 * i}"]
        o += [f"v_mov_b32 v{16 + i}, 0" for i in range(n, 13)]
        o += ["v_mov_b32 v29, s100", "v_mov_b32 v30, s96", "v_mov_b32 v31, s98"]
        o += [f"global_store_dwordx4 v1, {vr(16 + 4 * i, 4)}, s[20:21] offset:{16 * i}" for i in range(4)]
    return o


def main():
    segs = {}
    segs["setup"] = setup()
    segs["issueE"] = issue_e() + addresses("E")
    segs["issueL"] = issue_l() + addresses("L")
    segs["fragsE"] = frags_e()
    segs["fragsL"] = frags_l()
    segs["preE"] = pre_e()
    segs["preL"] = pre_l()
    segs["convE"] = conv_e()
    segs["convL"] = conv_l()
    segs["lnE"] = layernorm_e()
    segs["lnL"] = layernorm_l()
    roles = {"E": OPT["roles"][0], "L": OPT["roles"][1]}
    for g in "EL":
        segs["main" + g] = mlp_main(g, roles[g])
        segs["tail" + g] = mlp_tail(g, roles[g])
    segs["tailE"] += ["s_branch L_epi"]
    segs["epi"] = ["L_epi:"] + epilogue()
    traces = {
        "E": ["setup", "issueE", "fragsE", "preE", "convE", "lnE"],
        "L": ["setup", "issueL", "fragsL", "preL", "convL", "lnL"]}
    for g in "EL":
        traces[g] += ["main" + g, "tail" + g, "epi"]
    fix(segs, traces, verbose=bool(OPT.get("v")), lax=OPT["stamps"] and OPT["set"] == "cv")
    ref = open(f"cdna_kernels/{KN}.s.ref").read().split("\n")
    head = [l for l in ref if l.startswith(";") and "@launch" not in l]
    order = ["setup", "issueE", "fragsE", "preE", "convE", "lnE", "mainE", "tailE",
             "issueL", "fragsL", "preL", "convL", "lnL", "mainL", "tailL", "epi"]
    out = head + [f"; @launch grid=(200,1,1) block=(512,1,1) lds={LDS_BYTES}",
                  '.amdgcn_target "amdgcn-amd-amdhsa--gfx950"', ".text", f".globl {KN}_kernel", ".p2align 8",
                  f".type {KN}_kernel,@function", f"{KN}_kernel:"]
    for s in order:
        out += [f"; ---- {s}"] + [l if l.endswith(":") or l.startswith(".") else "    " + l.rstrip() for l in segs[s]]
    out += ["L_end:", "    s_endpgm", "L_codeend:",
            '.section .rodata,"a"', ".p2align 6", f".amdhsa_kernel {KN}_kernel",
            "  .amdhsa_next_free_vgpr 256", "  .amdhsa_next_free_sgpr 102", "  .amdhsa_accum_offset 256",
            "  .amdhsa_group_segment_fixed_size 0", "  .amdhsa_kernarg_size 80", "  .amdhsa_user_sgpr_count 2",
            "  .amdhsa_user_sgpr_kernarg_segment_ptr 1", "  .amdhsa_system_sgpr_workgroup_id_x 1",
            ".end_amdhsa_kernel"]
    open(sys.argv[1], "w").write("\n".join(out) + "\n")
    if OPT["stamps"]:
        open(sys.argv[1] + ".stamps", "w").write(" ".join(STAMPS))


if __name__ == "__main__":
    main()
```

```python
import math
import struct
import sys

from hazard import fix

KN = "standalone__modern_conv_block_convnext__vision"
OPT = dict(xnt="nt", snt="sc1", stamps=0, pf=1, roles="BA", set="all", al=0, shift=0, pairw=5, up=16, w0first=1, eprio=1, lconv=3, eln=2, xin=1, win=1, prerows=0, midrows=4, bf=3, sig3=34, solo=0, soloprio=0, pk=22, pke=4, pkn=3, pks=1, pkq=0, pfw=7, pfn=5, lay=0, pfpos=1)
for a in sys.argv[2:]:
    k, v = a.split("=")
    OPT[k] = int(v) if v.lstrip("-").isdigit() else v


def f32(x):
    return "0x%08x" % struct.unpack("<I", struct.pack("<f", x))[0]


LOG2E = 1.4426950408889634
K1 = 2.0 * math.sqrt(2.0 / math.pi)
BETA = -((LOG2E * K1 * 0.044715) ** (1.0 / 3.0))
CGELU = LOG2E * K1 / -BETA

PAIR = 24576
XIMG = 3 * PAIR
DWT = XIMG + 76800
TAB = DWT + 8192
FL = TAB + 4096
LDS_BYTES = FL + 64
B2OFF, GAMOFF = 2048, 3072
XB = 224 * 224 * 192
ROWB = 224 * 192
BIG = 0x20000000

LANE, XV, WV1, IDX, AW1, AW2, ABI, XRA, OW, WV2, GO, AGAM, FLW, FLR = 0, 1, 2, 3, 4, 5, 6, 7, 8, 9, 10, 13, 14, 15
CACC, AF, BB, CP, EXW, EXR, DG = 16, 64, 124, 244, 247, WV1, 248
ACC2, ACC1, BOP, W1F, W2F, GR, TR, BIAS, XRES, TMP = 16, 64, 96, 120, 144, 168, 176, 192, 208, 232
SX, SDW, SW1, SW2, ST, SO = 24, 28, 32, 36, 16, 40
P_B1, P_B2, P_GA = 4, 6, 8
WAVE, KQ, TY, TX, SROW, SM0, SA, SB, SC, OBASE, WG2, XK, WG1, WM0, ITER, SCALE = range(48, 64)
KONE, KC = 4, 6
STAMP = 64
nstamp = [0]


def stamp(name, drain=False, same=False):
    if not OPT["stamps"] or name not in STAMPSETS[OPT["set"]]:
        return []
    same = name in STAMPS
    if drain and OPT["set"] != "cv":
        return stamp(name) + ["s_waitcnt lgkmcnt(0)"]
    if same:
        n = STAMPS.index(name)
    else:
        n = nstamp[0]
        nstamp[0] += 1
        STAMPS.append(name)
    ins = "s_memrealtime" if OPT["stamps"] == 2 else "s_memtime"
    return [f"{ins} s[{STAMP + 2 * n}:{STAMP + 2 * n + 1}]"]


STAMPS = []
STAMPSETS = {
    "all": "start karg issued dw frags x conv ln mlp issued_st end".split(),
    "pro": "start karg issued addr landed tab dw frags x conv stats ln end".split(),
    "cv": "start x c0 c1 c2 conv sig stats l0 l1 l2 ln end".split(),
    "m2": "start x conv ln head loop mlp poll lds issued_st end".split(),
    "mlp": "start ln head it0 it1 it2 it3 it4 mlp poll lds issued_st end".split(),
}


def vr(b, n):
    return f"v[{b}:{b + n - 1}]"


def srd(base, size):
    return [f"s_mov_b32 s{base + 2}, {size}", f"s_mov_b32 s{base + 3}, 0x20000"]


def poll(name, ka=None, kb=None, tmp=None, addr=FLR):
    def chk(reg, k):
        k = k if isinstance(k, str) else hex((0x80 - k) * 0x01010101)
        return [f"v_readfirstlane_b32 s{SA}, v{reg}", f"s_add_u32 s{SA}, s{SA}, {k}",
                f"s_andn2_b32 s{SA}, 0x80808080, s{SA}", f"s_cbranch_scc1 {name}"]
    if ka is not None and kb is not None:
        return [f"{name}:", f"ds_read_b64 {vr(tmp, 2)}, v{FLR}", "s_waitcnt lgkmcnt(0)"] + chk(tmp, ka) + chk(tmp + 1, kb)
    off = 0 if kb is None else 4
    return [f"{name}:", f"ds_read_b32 v{tmp}, v{addr} offset:{off}", "s_waitcnt lgkmcnt(0)"] + chk(tmp, kb if off else ka)


def recheck(name, k, tmp, late=True, addr=FLR):
    kk = k if isinstance(k, str) else hex((0x80 - k) * 0x01010101)
    return [f"v_readfirstlane_b32 s{SA}, v{tmp}", f"s_add_u32 s{SA}, s{SA}, {kk}",
            f"s_andn2_b32 s{SA}, 0x80808080, s{SA}", f"s_cbranch_scc0 {name}_ok"] + (
                poll(name, None, k, tmp) if late else poll(name, k, None, tmp, addr)) + [f"{name}_ok:"]


def flag_read(tmp, late=True):
    return [f"ds_read_b32 v{tmp}, v{FLR} offset:{4 if late else 0}"]


def signal(stage, tmp):
    return [f"v_mov_b32 v{tmp}, {stage}", f"ds_write_b8 v{FLW}, v{tmp}"]


def kflag(k):
    return hex((0x80 - k) * 0x01010101)


def flag_reset():
    return [f"v_mov_b32 v{FLR}, {FL}", f"v_mov_b32 v{IDX}, 0", f"v_add_u32 v{FLW}, s{WAVE}, v{FLR}",
            f"ds_write_b8 v{FLW}, v{IDX}"]


def setup():
    o = stamp("start")
    o += [f"s_load_dwordx2 s[{SX}:{SX + 1}], s[0:1], 0",
          f"v_readfirstlane_b32 s{WAVE}, v0",
          f"s_and_b32 s{SA}, s2, 7", f"s_lshr_b32 s{SB}, s2, 3", f"s_mul_i32 s{SA}, s{SA}, 25",
          f"s_cmp_ge_u32 s{SB}, 25", "s_cbranch_scc1 L_end",
          f"s_add_u32 s{SA}, s{SA}, s{SB}",
          f"s_cmp_ge_u32 s{SA}, 196", "s_cbranch_scc1 L_end",
          f"s_lshr_b32 s{WAVE}, s{WAVE}, 6",
          f"v_and_b32 v{LANE}, 63, v0",
          f"s_mul_hi_u32 s{TY}, s{SA}, 0x12492493",
          f"s_and_b32 s{KQ}, s{WAVE}, 3",
          f"s_mul_i32 s{SB}, s{TY}, 14", f"s_sub_u32 s{TX}, s{SA}, s{SB}",
          f"s_cmp_lt_u32 s{WAVE}, 4", "s_cbranch_scc0 L_issueL"]
    if OPT["pf"]:
        k = o.index(f"v_readfirstlane_b32 s{WAVE}, v0") + 1
        o[k:k] = [f"s_lshr_b32 s{SC}, s2, 3", f"s_cmp_ge_u32 s{WAVE}, {64 * OPT['pfw']}",
                  f"s_cselect_b32 s{SB}, s{SC}, 63", f"s_cmp_lt_u32 s{SB}, {OPT['pfn']}", "s_cbranch_scc1 L_pf", "L_pfdone:"]
    return o


def prefetch():
    nw = 8 - OPT["pfw"]
    return ["L_pf:", "s_getpc_b64 s[14:15]", "L_pc:", f"v_subrev_u32 v{PFV}, {64 * OPT['pfw']}, v0",
            f"s_mul_i32 s{SC}, s{SC}, {8192 * nw}", f"v_lshl_add_u32 v{PFV}, v{PFV}, 7, s{SC}",
            f"v_min_u32 v{PFV}, L_codeend-{KN}_kernel-4, v{PFV}", f"s_sub_u32 s14, s14, L_pc-{KN}_kernel",
            "s_subb_u32 s15, s15, 0", f"global_load_dword v{PFV}, v{PFV}, s[14:15]", "s_branch L_pfdone"]


def more_args():
    o = [f"s_load_dwordx2 s[{SW1}:{SW1 + 1}], s[0:1], 16",
         f"s_load_dwordx2 s[{SW2}:{SW2 + 1}], s[0:1], 32",
         f"s_load_dwordx2 s[{SO}:{SO + 1}], s[0:1], 56"]
    if OPT["stamps"]:
        o += ["s_load_dwordx2 s[20:21], s[0:1], 72", "s_memrealtime s[100:101]"]
    return o


def xrow(r):
    return [f"s_add_u32 m0, s{SM0}, {3840 * r}", f"s_add_u32 s{SA}, s{SROW}, {ROWB * r}",
            f"buffer_load_dwordx4 v{XV}, s[{SX}:{SX + 3}], s{SA} offen {OPT['xnt']} lds"]


AP, MASK, PFV, SETT, PP = BB, BB + 4, BB + 100, BB + 18, BB + 32
PAF, PBB, PCP = 28, 220, 252
PMASK, TABV, PSET = PBB + 4, PBB + 8, PBB + 16


def xaddr_dma(a):
    b, c = a + 1, a + 2
    o = [f"v_mul_u32_u24 v{a}, 43, v{LANE}", f"s_mul_i32 s{SB}, s{KQ}, 5", f"v_lshrrev_b32 v{a}, 9, v{a}",
         f"v_mul_u32_u24 v{b}, 12, v{a}", f"v_add_u32 v{a}, s{SB}, v{a}", f"v_sub_u32 v{b}, v{LANE}, v{b}",
         f"s_lshl_b32 s{SB}, s{TX}, 4", f"v_bfe_u32 v{c}, v{a}, 2, 2", f"s_sub_u32 s{SB}, s{SB}, 2",
         f"v_xor_b32 v{b}, v{b}, v{c}", f"v_add_u32 v{a}, s{SB}, v{a}",
         f"v_min_u32 v{a}, 0xe0, v{a}", f"v_add_u32 v{c}, 32, v{a}", f"v_lshrrev_b32 v{c}, 8, v{c}",
         f"v_mul_u32_u24 v{a}, 0xc0, v{a}", f"v_lshl_add_u32 v{a}, v{b}, 4, v{a}",
         f"v_lshl_add_u32 v{XV}, v{c}, 29, v{a}",
         f"s_mul_i32 s{SROW}, s{TY}, {16 * ROWB}", f"s_sub_u32 s{SROW}, s{SROW}, {2 * ROWB}",
         f"s_mul_i32 s{SM0}, s{KQ}, 960", f"s_add_u32 s{SM0}, s{SM0}, {XIMG}"]
    return o + srd(SX, XB)


M60, MFULL = ["s_bfm_b64 exec, 60, 0"], ["s_mov_b64 exec, -1"]


def issue_e():
    a, b = PSET + 3, PSET + 4
    o = ["s_setprio 3", f"s_load_dwordx2 s[{SDW}:{SDW + 1}], s[0:1], 8",
         f"s_load_dwordx2 s[{P_B1}:{P_B1 + 1}], s[0:1], 24",
         f"s_load_dwordx2 s[{P_B2}:{P_B2 + 1}], s[0:1], 40",
         f"s_load_dwordx2 s[{P_GA}:{P_GA + 1}], s[0:1], 48",
         f"v_lshlrev_b32 v{WV2}, 4, v{LANE}",
         f"s_lshl_b32 s{SB}, s{KQ}, 11", f"s_sub_u32 s{SC}, s{SB}, 960", f"v_add_u32 v{a}, s{SC}, v{WV2}",
         f"v_add_u32 v{b}, 0x400, v{a}", f"s_add_u32 m0, s{SB}, {DWT}"] + srd(SDW, 4800) + xaddr_dma(PSET)
    o += [f"s_mov_b32 s{ST + 3}, 0x20000",
          f"s_cmp_lt_u32 s{KQ}, 2", f"s_movk_i32 s{ST + 2}, 192", f"s_cmov_b32 s{ST + 2}, 768",
          f"s_cselect_b32 s{SC}, s{KQ}, 0", f"s_lshl_b32 s{SC}, s{SC}, 9",
          f"v_lshl_add_u32 v{TABV + 2}, v{LANE}, 3, s{SC}",
          f"s_cmp_eq_u32 s{TY}, 0", f"s_cselect_b32 s{SB}, {BIG}, s{SROW}", "s_waitcnt lgkmcnt(0)"] + stamp("karg")
    o += [f"buffer_load_dwordx4 v{a}, s[{SDW}:{SDW + 3}], 0 offen lds",
          f"s_add_u32 m0, m0, 0x400",
          f"s_cmp_eq_u32 s{KQ}, 2", f"s_cselect_b64 s[{ST}:{ST + 1}], s[{P_B2}:{P_B2 + 1}], s[{P_B1}:{P_B1 + 1}]",
          f"buffer_load_dwordx4 v{b}, s[{SDW}:{SDW + 3}], 0 offen lds",
          f"s_cmp_eq_u32 s{KQ}, 3", f"s_cselect_b64 s[{ST}:{ST + 1}], s[{P_GA}:{P_GA + 1}], s[{ST}:{ST + 1}]",
          f"s_mov_b32 s{SCALE}, {f32(BETA)}", f"s_cmov_b32 s{SCALE}, {f32(1.0 / BETA)}",
          f"s_mov_b32 m0, s{SM0}",
          f"buffer_load_dwordx2 {vr(TABV, 2)}, v{TABV + 2}, s[{ST}:{ST + 3}], 0 offen"] + M60
    o += [f"buffer_load_dwordx4 v{XV}, s[{SX}:{SX + 3}], s{SB} offen {OPT['xnt']} lds",
          f"s_add_u32 m0, s{SM0}, 3840", f"s_add_u32 s{SB}, s{SB}, {ROWB}",
          f"buffer_load_dwordx4 v{XV}, s[{SX}:{SX + 3}], s{SB} offen {OPT['xnt']} lds"] + more_args()
    for r in range(2, 12):
        o += xrow(r)
    o += MFULL + flag_reset()
    return o


def issue_l():
    o = ["L_issueL:"] + more_args() + [f"v_lshlrev_b32 v{WV2}, 4, v{LANE}"] + xaddr_dma(SETT)
    o += flag_reset() + stamp("karg")
    return o


def wpiece(grp, k):
    if grp == "E":
        o = [f"s_add_u32 m0, s{WM0}, {1024 * k}", f"s_add_u32 s{SA}, s{WG1}, {6144 * k}",
             f"buffer_load_dwordx4 v{WV1}, s[{SW1}:{SW1 + 3}], s{SA} offen lds"]
        return o + [f"s_add_u32 s{WM0}, s{WM0}, {PAIR}", f"s_add_u32 s{WG1}, s{WG1}, 128"] * (k == 2)
    o = [f"s_mov_b32 m0, s{WM0}", f"s_add_u32 s{WM0}, s{WM0}, {PAIR}"] * (k == 0)
    o += [f"buffer_load_dwordx4 v{WV2}, s[{SW2}:{SW2 + 3}], s{WG2} offen offset:{1024 * k} lds"]
    return o + [f"s_add_u32 s{WG2}, s{WG2}, 12288"] * (k == 2)


def wdma(pairs, w1=True, w2=True):
    o = []
    for p in pairs:
        for i in range(3 * w1):
            o += [f"s_add_u32 m0, s{WM0}, {PAIR * p + 1024 * i}", f"s_add_u32 s{SA}, s{WG1}, {128 * p + 6144 * i}",
                  f"buffer_load_dwordx4 v{WV1}, s[{SW1}:{SW1 + 3}], s{SA} offen lds"]
        if not w2:
            continue
        o += [f"s_add_u32 m0, s{WM0}, {PAIR * p + 12288}", f"s_add_u32 s{SA}, s{WM0}, {12288 * p}"]
        o += [f"buffer_load_dwordx4 v{WV2}, s[{SW2}:{SW2 + 3}], s{SA} offen offset:{1024 * i} lds" for i in range(3)]
    return o


def addresses(grp):
    o = stamp("issued")
    E = grp == "E"
    n, g, hf, s, rho, c, t, u, w = ((PSET if E else SETT) + 5 + i for i in range(9))
    ap, mask, cp = (PBB, PMASK, PCP) if E else (AP, MASK, CP)
    o += [f"v_and_b32 v{n}, 15, v{LANE}", f"v_lshrrev_b32 v{g}, 4, v{LANE}", f"v_lshrrev_b32 v{hf}, 5, v{LANE}",
          f"v_and_b32 v{s}, 1, v{g}", f"v_bfe_u32 v{rho}, v{LANE}, 2, 2", f"v_and_b32 v{c}, 3, v{LANE}"]
    o += [f"v_bfe_u32 v{t}, v{LANE}, 2, 3", f"v_mul_u32_u24 v{t}, 0x300, v{t}",
          f"v_lshl_add_u32 v{t}, v{hf}, 6, v{t}", f"v_lshl_add_u32 v{WV1}, v{c}, 4, v{t}",
          f"s_mul_i32 s{WM0}, s{KQ}, 3072", f"s_mul_i32 s{WG1}, s{KQ}, 18432"]
    o += srd(SW1, 73728) + srd(SW2, 73728) * (not E) + srd(SO, XB)
    o += [f"v_mul_u32_u24 v{IDX}, 0x5555, v{c}"]
    o += [f"v_and_b32 v{t}, 2, v{c}", f"v_and_b32 v{u}, 1, v{c}", f"v_mul_u32_u24 v{u}, 960, v{u}",
          f"v_lshlrev_b32 v{t}, 2, v{t}", f"v_lshl_add_u32 v{t}, v{rho}, {4 if E else 6}, v{t}",
          f"v_sub_u32 v{t}, v{t}, v{u}"]
    if E:
        o += [f"v_add_u32 v{t}, {DWT + 960}, v{t}"]
        tabs = [[0, 2, 10, 12], [20, 22, 1, 3], [11, 13, 21, 23], [4, 14, 24, 30]]
    else:
        o += [f"s_lshl_b32 s{SA}, s{KQ}, 4", f"s_add_u32 s{SA}, s{SA}, {DWT + 960}", f"v_add_u32 v{t}, s{SA}, v{t}"]
        tabs = [[0, 2, 1, 3], [4, 14, 24, 30], [30, 4, 14, 24]]
    o += [f"v_lshlrev_b32 v{w}, 3, v{g}", f"s_movk_i32 s{SB}, 0xc0"]
    for q, tab in enumerate(tabs):
        cst = sum(v << (8 * i) for i, v in enumerate(tab))
        o += [f"s_mov_b32 s{SA}, {cst}", f"v_bfe_u32 v{ap + q}, s{SA}, v{w}, 8",
              f"v_mad_u32_u24 v{ap + q}, v{ap + q}, s{SB}, v{t}"]
    o += [f"v_bfe_i32 v{t}, v{LANE}, 3, 1", f"v_lshrrev_b32 v{mask + 2}, 16, v{t}",
          f"v_and_b32 v{mask + 3}, 0xffff0000, v{t}", f"v_xor_b32 v{mask}, 0xffff, v{mask + 2}",
          f"v_xor_b32 v{mask + 1}, 0xffff0000, v{mask + 3}"]

    def xaddr(dst, col, row, extra):
        return ([f"v_bfe_u32 v{t}, v{col}, 2, 2"] + [f"v_xor_b32 v{t}, {extra}, v{t}"] * bool(extra)
                + [f"v_mul_u32_u24 v{u}, 0xc0, v{col}", f"v_lshl_add_u32 v{t}, v{t}, 4, v{u}",
                   f"v_mul_u32_u24 v{u}, 0xf00, v{row}", f"v_add3_u32 v{dst}, v{t}, v{u}, s{SB}"])
    swz = "" if E else f"s{KQ}"
    o += [f"s_mul_i32 s{SB}, s{KQ}, 7680", f"s_add_u32 s{SB}, s{SB}, {XIMG}"] if E else [f"s_mov_b32 s{SB}, {XIMG + 30720}"]
    o += [f"v_lshl_add_u32 v{w}, v{hf}, 1, v{n}"] + xaddr(cp, w, s, swz)
    o += [f"v_add_u32 v{w}, 1, v{w}"] + xaddr(cp + 1, w, s, swz)
    o += [f"v_add_u32 v{w}, 4, v{n}"] + xaddr(cp + 2, w, g, swz)
    if E:
        o += [f"v_mul_u32_u24 v{u}, 7680, v{hf}", f"v_sub_u32 v{u}, v{cp + 2}, v{u}", f"v_add_u32 v{cp + 3}, 15360, v{u}"]
    o += [f"s_mul_i32 s{SB}, s{WAVE}, 7680", f"s_add_u32 s{SB}, s{SB}, {XIMG + 7680}",
          f"v_add_u32 v{w}, 2, v{n}"] + xaddr(XRA, w, s, f"v{hf}")
    if not E:
        o += [f"s_lshl_b32 s{SA}, s{KQ}, 9", f"s_add_u32 s{SA}, s{SA}, {XIMG}", f"v_lshl_add_u32 v{EXW}, v{LANE}, 3, s{SA}"]
        o += [f"v_and_b32 v{t}, 1, v{c}", f"v_lshlrev_b32 v{t}, 4, v{t}", f"s_movk_i32 s{SA}, 0x3f80",
              f"v_lshlrev_b32_e64 v{SETT}, v{t}, s{SA}",
              f"v_xor_b32 v{t}, v{rho}, v{hf}", f"v_and_b32 v{t}, 1, v{t}", f"v_xor_b32 v{t}, 1, v{t}",
              f"v_bfe_u32 v{u}, v{LANE}, 3, 2", f"v_lshrrev_b32 v{w}, 1, v{c}", f"v_lshl_add_u32 v{u}, v{u}, 1, v{w}",
              f"v_lshlrev_b32 v{t}, v{u}, v{t}"]
        o += [f"v_bfe_i32 v{DG + i}, v{t}, {i}, 1" for i in range(8)]
        o += [f"v_and_b32 v{DG + i}, v{DG + i}, v{SETT}" for i in range(8)]
    o += [f"v_lshl_add_u32 v{t}, v{hf}, 2, v{rho}", f"v_lshlrev_b32 v{u}, 5, v{s}",
          f"v_lshl_add_u32 v{w}, v{c}, 3, v{u}", f"v_lshl_add_u32 v{AW1}, v{t}, 6, v{w}",
          f"v_mul_u32_u24 v{t}, 0xc0, v{t}", f"v_and_b32 v{w}, 1, v{c}", f"v_lshl_add_u32 v{u}, v{w}, 4, v{u}",
          f"v_lshrrev_b32 v{w}, 1, v{c}", f"v_lshl_add_u32 v{u}, v{w}, 3, v{u}", f"v_add_u32 v{AW2}, v{t}, v{u}",
          f"v_lshlrev_b32 v{t}, 4, v{hf}", f"v_add_u32 v{ABI}, {TAB}, v{t}",
          f"v_add_u32 v{AGAM}, v{ABI}, v{t}"]
    o += [f"s_mul_i32 s{SB}, s{WAVE}, 6144",
          f"v_bfe_u32 v{t}, v{n}, 1, 2", f"v_xor_b32 v{t}, v{t}, v{hf}", f"v_and_b32 v{u}, 31, v{LANE}",
          f"v_mul_u32_u24 v{u}, 0xc0, v{u}", f"v_lshl_add_u32 v{t}, v{t}, 4, v{u}", f"v_add_u32 v{OW}, s{SB}, v{t}"]
    for k in range(3):
        o += [f"v_add_u32 v{t}, {64 * k}, v{LANE}", f"v_mul_u32_u24 v{u}, 171, v{t}",
              f"v_bfe_u32 v{u}, v{u}, 12, 2", f"v_xor_b32 v{t}, v{t}, v{u}", f"v_lshlrev_b32 v{GO + k}, 4, v{t}"]
    o += [f"s_lshl_b32 s{SA}, s{TY}, 4", f"s_lshl_b32 s{SB}, s{WAVE}, 1", f"s_add_u32 s{SA}, s{SA}, s{SB}",
          f"s_mul_i32 s{SA}, s{SA}, {ROWB}", f"s_mul_i32 s{SB}, s{TX}, 3072", f"s_add_u32 s{OBASE}, s{SA}, s{SB}"]
    o += [f"v_mov_b32 v{CACC + i}, 0" for i in range(12 if E else 48)]
    o += stamp("addr")
    return o


def paf(b, ac, q):
    return PAF + 48 * b + 16 * ac + 4 * q


def frags_e():
    o = ["s_waitcnt vmcnt(13) lgkmcnt(0)", "s_barrier"] + stamp("dw", True)
    items = [(ac, q, pp) for ac in range(3) for q in range(4) for pp in range(2)]

    def rd(k):
        ac, q, pp = items[k]
        return [f"ds_read_b64_tr_b16 {vr(paf(3, ac, q) + 2 * pp, 2)}, v{PBB + q} offset:{960 * pp + 64 * ac}"]
    for k in range(12):
        o += rd(k)
    for k, (ac, q, pp) in enumerate(items):
        if k % 4 == 0:
            o += [f"s_waitcnt lgkmcnt({min(8, 20 - k)})"]
            for kk in range(k + 12, min(k + 16, 24)):
                o += rd(kk)
        p = paf(3, ac, q) + 2 * pp
        for b in range(4):
            for g in range(2):
                o += [f"v_and_b32 v{paf(b, ac, q) + 2 * pp + g}, v{p + b // 2}, v{PMASK + 2 * g + b % 2}"]
    return o + stamp("frags")


def af(a, f):
    return AF + 20 * a + 4 * f


def frags_l():
    pre, mid = OPT["prerows"], OPT["midrows"]
    o = ["s_waitcnt lgkmcnt(0)"]
    if OPT["sig3"] == -2:
        o += wdma([0], w2=False)
    if pre:
        o += M60 + sum((xrow(r) for r in range(12, 12 + pre)), []) + MFULL
    o += ["s_barrier"] + stamp("dw", True)
    for f in range(5):
        for pp in range(2):
            o += [f"ds_read_b64_tr_b16 {vr(PP + 4 * f + 2 * pp, 2)}, v{AP + max(f - 2, 0)} "
                  f"offset:{960 * pp + (1920 * f if f < 3 else 0)}"]
    o += M60 + sum((xrow(r) for r in range(12 + pre, 12 + mid)), []) + MFULL
    for f in range(5):
        o += [f"s_waitcnt lgkmcnt({8 - 2 * f})"]
        for pp in range(2):
            for a in range(3):
                for g in range(2):
                    o += [f"v_and_b32 v{af(a, f) + 2 * pp + g}, v{PP + 4 * f + 2 * pp + a // 2}, v{MASK + 2 * g + a % 2}"]
    o += stamp("frags")
    return o


def pre_l():
    o = [f"s_waitcnt vmcnt({OPT['midrows']})"] * (OPT["sig3"] == -2)
    o += ["s_barrier"] + M60 + sum((xrow(r) for r in range(12 + OPT["midrows"], 20)), []) + MFULL
    o += wdma([0], w1=False) + wdma([1]) + stamp("tab")
    o += [f"s_add_u32 s{WG2}, s{WM0}, {2 * 12288}", f"s_add_u32 s{WM0}, s{WM0}, {2 * PAIR + 12288}",
          f"s_mul_i32 s{SA}, s{KQ}, 5632", f"v_add_u32 v{EXR}, s{SA}, v{EXW}"]
    o += ["s_waitcnt vmcnt(9)", "s_setprio 3"] + signal(2, SETT)
    return o + poll("L_pollRows", None, 2, SETT + 1) + [f"s_setprio {OPT['lconv']}"]


def pre_e():
    a = TABV
    o = wdma([0], w2=False) if OPT["sig3"] != -2 else []
    o += [f"s_lshl_b32 s{SA}, s{KQ}, 10", f"s_add_u32 s{SA}, s{SA}, {TAB}", f"v_add_u32 v{a + 2}, s{SA}, v{WV2}",
          "s_waitcnt vmcnt(15)" if OPT["sig3"] != -2 else "s_waitcnt vmcnt(12)",
          f"v_lshlrev_b32 v{a + 4}, 16, v{a}", f"v_and_b32 v{a + 5}, 0xffff0000, v{a}",
          f"v_lshlrev_b32 v{a + 6}, 16, v{a + 1}", f"v_and_b32 v{a + 7}, 0xffff0000, v{a + 1}"]
    o += [f"v_mul_f32 v{a + 4 + i}, s{SCALE}, v{a + 4 + i}" for i in range(4)]
    o += [f"ds_write_b128 v{a + 2}, {vr(a + 4, 4)}",
          f"s_add_u32 s{WM0}, s{WM0}, {2 * PAIR}", f"s_add_u32 s{WG1}, s{WG1}, 256",
          "s_waitcnt vmcnt(3)" if OPT["sig3"] >= 0 else "s_waitcnt vmcnt(0) lgkmcnt(0)"]
    return o + stamp("tab") + ["s_barrier"]


FV, PV = LANE, IDX


class LdsQueue:
    def __init__(self):
        self.n = 0
        self.done = 0

    def issue(self, lines):
        self.n += sum(l.startswith("ds_") for l in lines)
        return lines

    def wait(self, upto):
        if upto <= self.done:
            return []
        self.done = upto
        assert self.n - upto <= 15
        return [f"s_waitcnt lgkmcnt({self.n - upto})"]


NEG, SUMD = AF + 16, TR


def cacc(a, t):
    return CACC + 16 * a + 4 * t


LS, LQ = [PAF + 44, PAF + 45], [PAF + 46, PAF + 47]


def stats(b):
    o = []
    for j in range(12):
        v = CACC + 12 * b + j
        if b == 0 and j < 2:
            o += [f"v_add_f32 v{LS[j]}, v{v}, v{v + 2}", f"v_mul_f32 v{LQ[j]}, v{v}, v{v}"]
        elif b == 0 and j < 4:
            o += [f"v_fmac_f32 v{LQ[j % 2]}, v{v}, v{v}"]
        else:
            o += [f"v_add_f32 v{LS[j % 2]}, v{LS[j % 2]}, v{v}", f"v_fmac_f32 v{LQ[j % 2]}, v{v}, v{v}"]
    return o


def conv_e():
    o = ["L_convE:"] + stamp("x", True)
    steps = [(b, q, ac) for b in range(4) for q in range(4) for ac in range(3)]
    pool = [PBB + 8 * k for k in range(4)]
    extra = {11: [PAF + 36], 23: [PAF + 48, PAF + 56]}
    buf, mark = {}, {}
    lq = LdsQueue()

    def reads(nn):
        b, q, ac = steps[nn]
        buf[nn] = pool.pop(0)
        r = []
        for hb in range(2):
            i = 2 * q + hb
            pat, off = [(0, 7680 * i), (1, 7680 * (i - 3)), (i - 4, 0)][min(i // 3, 2)]
            if b and ac == 0 and i in (0, 3, 6, 7):
                r += [f"v_xor_b32 v{PCP + pat}, {16 * (b ^ (b - 1))}, v{PCP + pat}"]
            r += [f"ds_read_b128 {vr(buf[nn] + 4 * hb, 4)}, v{PCP + pat} offset:{off + 64 * ac}"]
        lq.issue(r)
        mark[nn] = lq.n
        return r
    issued = 0
    while pool:
        o += reads(issued)
        issued += 1
    for nn, (b, q, ac) in enumerate(steps):
        if lq.done < mark[nn]:
            o += lq.wait(mark[min(nn + (issued - nn >= 5), 47)])
        o += [f"v_smfmac_f32_16x16x64_bf16 {vr(CACC + 12 * b + 4 * ac, 4)}, {vr(paf(b, ac, q), 4)}, "
              f"{vr(buf[nn], 8)}, v{IDX}"]
        pool += [buf[nn]] + extra.get(nn, [])
        if nn == OPT["sig3"]:
            o += ["s_waitcnt vmcnt(0)"] + lq.issue(signal(3, FV))
        if nn == 40 and OPT["sig3"] >= 0:
            o += lq.issue(flag_read(FV, False))
        if nn in (11, 23, 35):
            o += stamp(f"c{nn // 12}")
        while pool and issued < 48:
            o += reads(issued)
            issued += 1
        k = 3 * q + ac
        if b == 0 and q == 3:
            o += [f"v_mov_b32 v{CACC + 12 + 4 * ac + i}, 0" for i in range(4)]
        if b in (1, 2) and k < 9:
            o += [f"v_mov_b32 v{CACC + 12 * (b + 1) + i}, 0" for i in range(12 * k // 9, 12 * (k + 1) // 9)]
        if b and k >= 2 and not OPT["pks"]:
            st = stats(b - 1)
            o += st[len(st) * (k - 2) // 10:len(st) * (k - 1) // 10]
    return o + stamp("conv", True)


def layernorm_e():
    def cv(cg, r):
        return CACC + 12 * (cg % 4) + 4 * (cg // 4) + r
    s, q = LS, LQ
    o = [f"s_setprio {OPT['eln']}"] + (recheck("L_pollW0", 3, FV, False) if OPT["sig3"] >= 0 else []) + D(-1, 0)
    o += [f"ds_read_b128 {vr(XRES + 8 * a, 4)}, v{XRA} offset:{64 * a}" for a in range(3)]
    o += [f"v_xor_b32 v{XRA}, 32, v{XRA}"]
    o += [f"ds_read_b128 {vr(XRES + 8 * a + 4, 4)}, v{XRA} offset:{64 * a}" for a in range(3)]
    o += signal(6, PV)
    if OPT["pks"]:
        a, b = TMP + 2, TMP + 4
        o += [f"v_pk_add_f32 {vr(s[0], 2)}, {vr(CACC, 2)}, {vr(CACC + 2, 2)}", f"v_pk_mul_f32 {vr(q[0], 2)}, {vr(CACC, 2)}, {vr(CACC, 2)}",
              f"v_pk_add_f32 {vr(a, 2)}, {vr(CACC + 4, 2)}, {vr(CACC + 6, 2)}", f"v_pk_mul_f32 {vr(b, 2)}, {vr(CACC + 2, 2)}, {vr(CACC + 2, 2)}"]
        for j in range(4, 48, 2):
            sa, qa = (s[0], q[0]) if j % 4 == 0 else (a, b)
            if j >= 8:
                o += [f"v_pk_add_f32 {vr(sa, 2)}, {vr(sa, 2)}, {vr(CACC + j, 2)}"]
            o += [f"v_pk_fma_f32 {vr(qa, 2)}, {vr(CACC + j, 2)}, {vr(CACC + j, 2)}, {vr(qa, 2)}"]
        o += [f"v_pk_add_f32 {vr(s[0], 2)}, {vr(s[0], 2)}, {vr(a, 2)}", f"v_pk_add_f32 {vr(q[0], 2)}, {vr(q[0], 2)}, {vr(b, 2)}"]
    else:
        o += stats(3)
    o += [f"v_add_f32 v{s[0]}, v{s[0]}, v{s[1]}", f"v_add_f32 v{q[0]}, v{q[0]}, v{q[1]}",
          f"v_mov_b32 v{s[1]}, v{s[0]}", f"v_mov_b32 v{q[1]}, v{q[0]}",
          f"v_permlane32_swap_b32 v{s[0]}, v{s[1]}", f"v_permlane32_swap_b32 v{q[0]}, v{q[1]}",
          f"v_add_f32 v{s[0]}, v{s[0]}, v{s[1]}", f"v_add_f32 v{q[0]}, v{q[0]}, v{q[1]}",
          f"v_mul_f32 v{s[0]}, {f32(1 / 96)}, v{s[0]}", f"v_mul_f32 v{q[0]}, {f32(1 / 96)}, v{q[0]}",
          f"v_fma_f32 v{q[0]}, -v{s[0]}, v{s[0]}, v{q[0]}", f"v_max_f32 v{q[0]}, 0, v{q[0]}",
          f"v_add_f32 v{q[0]}, {f32(1e-5)}, v{q[0]}", f"v_rsq_f32 v{TMP}, v{q[0]}",
          f"v_mul_f32 v{TMP}, {f32(BETA)}, v{TMP}", f"v_mul_f32_e64 v{TMP + 1}, -v{s[0]}, v{TMP}"] + stamp("stats")
    if OPT["pkn"] & 1:
        o += [f"v_pk_fma_f32 {vr(CACC + j, 2)}, {vr(CACC + j, 2)}, {vr(TMP, 2)}, {vr(TMP, 2)} op_sel:[0,0,1] op_sel_hi:[1,0,1]"
              for j in range(0, 48, 2)]
    for kk in range(6):
        for cg in (2 * kk, 2 * kk + 1):
            o += [f"v_fma_f32 v{cv(cg, r)}, v{cv(cg, r)}, v{TMP}, v{TMP + 1}" for r in range(4) if not OPT["pkn"] & 1]
        if kk == 1:
            o += ["s_waitcnt lgkmcnt(0)"]
        c4 = [f"v_cvt_pk_bf16_f32 v{BOP + 2 * cg + i}, v{cv(cg, 2 * i)}, v{cv(cg, 2 * i + 1)}"
              for cg in (2 * kk, 2 * kk + 1) for i in range(2)]
        m = [mf(ACC1, W1F + 4 * (kk - 1), BOP + 4 * (kk - 1), BIAS if kk == 1 else ACC1)] if kk else []
        o += c4[:2] + m + c4[2:] if OPT["pkn"] & 1 else m + c4
    rd = [f"ds_read_b128 {vr(ACC2 + 4 * i, 4)}, v{AGAM} offset:{B2OFF + 64 * (i // 2) + 16 * (i % 2)}" for i in range(12)]
    return o + rd[:2] + [mf(ACC1, W1F + 20, BOP + 20, ACC1)] + rd[2:] + stamp("ln")


def conv_l():
    o = stamp("x", True)
    q = LdsQueue()
    mark = {}

    def reads(a, u):
        b = BB + 60 * (a % 2)
        if u < 6:
            r = [f"ds_read_b128 {vr(b + 8 * u + 4 * h, 4)}, v{CP + h} offset:{7680 * u + 64 * a}" for h in range(2)]
        else:
            r = [f"ds_read_b128 {vr(b + 48 + 4 * j, 4)}, v{CP + 2} offset:{15360 * j + 64 * a}"
                 for j in ((0, 1) if u == 6 else (2,))]
        q.issue(r)
        mark[a, u] = q.n
        return r

    def pack(a):
        return [f"v_cvt_pk_bf16_f32 v{af(a, 0) + 2 * t + i}, v{cacc(a, t) + 2 * i}, v{cacc(a, t) + 2 * i + 1}"
                for t in range(4) for i in range(2)]

    def sm(a, t, f, b):
        return f"v_smfmac_f32_16x16x64_bf16 {vr(cacc(a, t), 4)}, {vr(af(a, f), 4)}, {vr(b, 8)}, v{IDX}"

    def put(a, t):
        return [f"ds_write_b64 v{EXW}, {vr(af(a, 0) + 2 * t, 2)} offset:{6144 * t + 2048 * a}"]
    xres = [f"ds_read_b128 {vr(XRES + 8 * a, 4)}, v{XRA} offset:{64 * a}" for a in range(3)]
    xres += [f"v_xor_b32 v{XRA}, 32, v{XRA}"]
    xres += [f"ds_read_b128 {vr(XRES + 8 * a + 4, 4)}, v{XRA} offset:{64 * a}" for a in range(3)]
    for u in range(8):
        o += reads(0, u)
    todo = [(a, u) for a in (1, 2) for u in range(8)]
    for a in range(3):
        b = BB + 60 * (a % 2)
        pk = pack(a - 1) if a else []
        for u in range(8):
            o += q.wait(mark[a, u])
            if u == 0:
                o += stamp(f"c{a}")
            if a == 1 and u == 0:
                o += ["s_waitcnt vmcnt(0)"] + q.issue(signal(3, FV + 1) + flag_read(FV, False))
            while todo and todo[0][0] <= a + 1 and q.n + 2 - q.done <= 15:
                o += reads(*todo.pop(0))
            if a == 2:
                if u == 0:
                    o += recheck("L_pollTop", 6, FV, False)
                if u >= 2:
                    o += q.issue(xres[u - 2:u - 1] if u < 5 else xres[3:5] if u == 5 else xres[u - 1:u])
                o += q.issue(put(u // 4, u % 4))
            if u < 6:
                ms = [sm(a, t, u - t, b + 8 * u) for t in range(4) if 0 <= u - t <= 2]
            else:
                ms = [sm(a, t, 3 + t % 2, b + 48 + 4 * (t // 2)) for t in ((0, 1) if u == 6 else (2, 3))]
            for m in ms:
                o += [m]
                if u >= 1:
                    o += pk[:1]
                    pk = pk[1:]
    o += stamp("conv", True)
    pk = pack(2)
    for t in range(4):
        o += pk[2 * t:2 * t + 2] + put(2, t)
    o += signal(4, TMP + 2) + stamp("sig")
    o += [f"v_mov_b32 v{NEG + i}, 0xbf80bf80" for i in range(4)]
    o += [f"v_mov_b32 v{TMP + 1}, {f32(1e-5)}", f"v_mov_b32 v{PV}, 6"]
    o += ["s_setprio 3"] + poll("L_pollEx", None, 4, TMP + 4)
    o += stamp("stats", True)
    return o


def layernorm_l():
    q = [TMP + 6, TMP + 7]
    d = D(-1, 0)
    o = [f"ds_read_b64 {vr(BOP + 2 * cg, 2)}, v{EXR} offset:{512 * cg}" for cg in range(12)]


    def wide(kk):
        dst = CACC + 16 * (kk // 2)
        return f"v_mfma_f32_32x32x16_bf16 {vr(dst, 16)}, {vr(DG + 4 * (kk % 2), 4)}, {vr(BOP + 4 * kk, 4)}, {vr(dst, 16) if kk % 2 else 0}"

    def total(kk):
        return f"v_mfma_f32_32x32x16_bf16 {vr(SUMD, 16)}, {vr(NEG, 4)}, {vr(BOP + 4 * kk, 4)}, {vr(SUMD, 16) if kk else 0}"
    sq = [f"v_mul_f32 v{q[j]}, v{CACC + j}, v{CACC + j}" for j in range(2)]
    sq += [f"v_fmac_f32 v{q[j % 2]}, v{CACC + j}, v{CACC + j}" for j in range(2, 48)]
    o += ["s_waitcnt lgkmcnt(10)", wide(0), "s_waitcnt lgkmcnt(8)", wide(1), "s_waitcnt lgkmcnt(4)"] + d[:4] + [wide(2)]
    o += d[4:8] + [wide(3), "s_waitcnt lgkmcnt(8)", f"ds_write_b8 v{FLW}, v{PV}"] + d[8:11] + [wide(4)] + stamp("l0")
    o += d[11:16] + [wide(5)]
    if OPT["pkq"]:
        o += [total(kk) for kk in range(6)]
        o += [f"v_pk_mul_f32 {vr(q[0], 2)}, {vr(CACC, 2)}, {vr(CACC, 2)}", f"v_pk_mul_f32 {vr(TMP + 4, 2)}, {vr(CACC + 2, 2)}, {vr(CACC + 2, 2)}"]
        o += [f"v_pk_fma_f32 {vr(r, 2)}, {vr(CACC + j, 2)}, {vr(CACC + j, 2)}, {vr(r, 2)}"
              for j in range(4, 48, 2) for r in [q[0] if j % 4 == 0 else TMP + 4]]
        o += [f"v_pk_add_f32 {vr(q[0], 2)}, {vr(q[0], 2)}, {vr(TMP + 4, 2)}"]
    else:
        for kk in range(6):
            o += sq[6 * kk:6 * kk + 6] + [total(kk)]
        o += sq[36:]
    o += stamp("l1")
    o += [f"v_add_f32 v{q[0]}, v{q[0]}, v{q[1]}", f"v_mov_b32 v{q[1]}, v{q[0]}",
          f"v_mul_f32 v{SUMD}, {f32(1 / 96)}, v{SUMD}",
          f"v_permlane32_swap_b32 v{q[0]}, v{q[1]}", f"v_add_f32 v{q[0]}, v{q[0]}, v{q[1]}",
          f"v_fmamk_f32 v{q[0]}, v{q[0]}, {f32(1 / 96)}, v{TMP + 1}", f"v_fma_f32 v{q[0]}, -v{SUMD}, v{SUMD}, v{q[0]}",
          f"v_max_f32 v{q[0]}, v{TMP + 1}, v{q[0]}", f"v_rsq_f32 v{TMP}, v{q[0]}",
          "s_waitcnt lgkmcnt(0)", f"v_mul_f32 v{TMP}, {f32(BETA)}, v{TMP}",
          f"v_mul_f32 v{TMP + 1}, v{SUMD}, v{TMP}"] + stamp("l2")
    if OPT["pkn"] & 2:
        o += [f"v_pk_fma_f32 {vr(CACC + j, 2)}, {vr(CACC + j, 2)}, {vr(TMP, 2)}, {vr(TMP, 2)} op_sel:[0,0,1] op_sel_hi:[1,0,1]"
              for j in range(0, 48, 2)]
    for kk in range(6):
        o += [f"v_fma_f32 v{CACC + 8 * kk + j}, v{CACC + 8 * kk + j}, v{TMP}, v{TMP + 1}" for j in range(8) if not OPT["pkn"] & 2]
        c4 = [f"v_cvt_pk_bf16_f32 v{BOP + 4 * kk + i}, v{CACC + 8 * kk + 2 * i}, v{CACC + 8 * kk + 2 * i + 1}" for i in range(4)]
        m = [mf(ACC1, W1F + 4 * (kk - 1), BOP + 4 * (kk - 1), BIAS if kk == 1 else ACC1)] if kk else []
        o += c4[:2] + m + c4[2:] if OPT["pkn"] & 2 else m + c4
    rd = [f"ds_read_b128 {vr(ACC2 + 4 * i, 4)}, v{AGAM} offset:{B2OFF + 64 * (i // 2) + 16 * (i % 2)}" for i in range(12)]
    o += rd[:2] + [mf(ACC1, W1F + 20, BOP + 20, ACC1)] + rd[2:]
    o += stamp("ln")
    return o


def mf(d, a, b, c):
    return f"v_mfma_f32_32x32x16_bf16 {vr(d, 16)}, {vr(a, 4)}, {vr(b, 4)}, {vr(c, 16)}"


def hreg(h, i):
    return ACC1 + 16 * ((h // 2) % 2) + 8 * (h % 2) + i


def treg(h, i):
    return TR + 8 * (h % 2) + i


def greg(h):
    return GR + 4 * (h % 2)


def ok(h):
    return 0 <= h < 24


def gemm2(h, frag):
    return [mf(ACC2 + 16 * m, frag + 4 * m, greg(h), ACC2 + 16 * m) for m in range(3)]


TAILFRAG = {23: W1F, 24: W2F + 12, 25: W1F + 12}


def S(b, fill=()):
    T = [f"v_rcp_f32 v{treg(b - 1, i)}, v{treg(b - 1, i)}" for i in range(8) if ok(b - 1)]
    T += [f"v_exp_f32 v{treg(b, i)}, v{treg(b, i)}" for i in range(8) if ok(b)]
    cv = [f"v_cvt_pk_bf16_f32 v{greg(b - 2) + i}, v{hreg(b - 2, 2 * i)}, v{hreg(b - 2, 2 * i + 1)}"
          for i in range(4) if ok(b - 2)]
    ms = []
    if b % 2 and b <= 21:
        d = ACC1 + 16 * (((b + 1) // 2) % 2)
        ms = [mf(d, W1F + 4 * k, BOP + 4 * k, BIAS if k == 0 else d) for k in range(6)]
    elif b >= 23:
        ms = gemm2(b - 2, TAILFRAG[b])
    elif b % 2 == 0 and b >= 2:
        ms = (gemm2(b - 3, W2F) if ok(b - 3) else []) + gemm2(b - 2, W2F + 12)
    o = list(cv)
    if b >= 23 or b == 2:
        T = T + list(fill)
        o += T[:2]
        T = T[2:]
        n = 6 if b == 25 else 3
        for m in ms:
            o += [m] + T[:n]
            T = T[n:]
        return o + T
    for m in ms:
        o += [m] + T[:3]
        T = T[3:]
    return o + T


def F(b, pk=False):
    if pk:
        prs = range(0, 8, 2)
        o = [f"v_pk_add_f32 {vr(treg(b, i), 2)}, {vr(treg(b, i), 2)}, s[{KONE}:{KONE + 1}]" for i in prs if ok(b)]
        o += [f"v_pk_mul_f32 {vr(hreg(b - 1, i), 2)}, {vr(hreg(b - 1, i), 2)}, {vr(treg(b - 1, i), 2)}" for i in prs if ok(b - 1)]
        if ok(b + 1):
            o += [f"v_pk_fma_f32 {vr(treg(b + 1, i), 2)}, {vr(hreg(b + 1, i), 2)}, {vr(hreg(b + 1, i), 2)}, s[{KC}:{KC + 1}]" for i in prs]
            o += [f"v_pk_mul_f32 {vr(treg(b + 1, i), 2)}, {vr(hreg(b + 1, i), 2)}, {vr(treg(b + 1, i), 2)}" for i in prs]
        return o
    o = [f"v_add_f32 v{treg(b, i)}, 1.0, v{treg(b, i)}" for i in range(8) if ok(b)]
    o += [f"v_mul_f32 v{hreg(b - 1, i)}, v{hreg(b - 1, i)}, v{treg(b - 1, i)}" for i in range(8) if ok(b - 1)]
    if ok(b + 1):
        o += [f"v_fmaak_f32 v{treg(b + 1, i)}, v{hreg(b + 1, i)}, v{hreg(b + 1, i)}, {f32(CGELU)}" for i in range(8)]
        o += [f"v_mul_f32 v{treg(b + 1, i)}, v{hreg(b + 1, i)}, v{treg(b + 1, i)}" for i in range(8)]
    return o


def w2reads(h, frag, base):
    off = (h // 4 - base) * PAIR + 12288 + 3072 * (h % 4)
    return [f"ds_read_b64_tr_b16 {vr(frag + 4 * m + 2 * hf, 2)}, v{AW2} offset:{off + 1536 * hf + 64 * m}"
            for m in range(3) for hf in range(2)]


def D(b, base):
    if b % 2 and b <= 21:
        ch = (b + 1) // 2
        off = (ch // 2 - base) * PAIR + 512 * (ch % 2)
        o = [f"ds_read_b128 {vr(BIAS + 4 * k, 4)}, v{ABI} offset:{128 * ch + 32 * k}" for k in range(4)]
        return o + [f"ds_read_b64_tr_b16 {vr(W1F + 2 * k, 2)}, v{AW1} offset:{off + 1024 * k}" for k in range(12)]
    if b >= 23:
        return w2reads(b - 2, TAILFRAG[b], base) if b <= 25 else []
    if b % 2 == 0 and b >= 2:
        return (w2reads(b - 3, W2F, base) if ok(b - 3) else []) + w2reads(b - 2, W2F + 12, base)
    return []


def block(role, b, base, pre=(), post=(), fast=(), pk=False):
    w = ["s_waitcnt lgkmcnt(0)"]
    d = list(pre) + D(b + 1, base) + list(post)
    f = F(b, pk) + list(fast)
    if pk == "solo":
        return w + S(b) + d + f
    if role == "A":
        k = 1 if pre else 0
        return ["s_setprio 2"] + w + S(b) + d[:k] + ["s_setprio 0"] + d[k:] + f
    if role == "N":
        return w + d + S(b) + f
    return w + d + ["s_setprio 1"] + S(b) + ["s_setprio 3"] + f


def mlp_main(grp, role):
    first = {"E": lambda p: 4 * p - 8, "L": lambda p: max(4 * p - 10, 0) + (p == 3)}[grp]
    piece, confirm = {}, {}
    for p in range(2, 6):
        for k in range(3):
            piece.setdefault(first(p) + k, []).append(k)
        confirm[first(p) + 4] = p + 5
    need = {4 * p - 2: (False, p + 5) for p in range(2, 6)}
    need.update({4 * p + 1: (True, p + 5) for p in range(2, 6)})
    if grp == "E":
        need.update({1: (True, 3), first(3): (True, 6)})
    else:
        need.update({first(3): (True, 6)})
    solo = OPT["solo"] if grp == "E" else 0
    o = ["s_setprio %d" % (OPT["soloprio"] if solo else {"A": 0, "B": 3}[role]), f"v_mov_b32 v{PV}, 7"]
    o += [f"s_mov_b32 s{KONE + i}, 1.0" for i in range(2)] + [f"s_mov_b32 s{KC + i}, {f32(CGELU)}" for i in range(2)]
    o += F(-1, grp == "E" and OPT["pke"] > 0)
    for b in range(22):
        pre = recheck(f"L_need{grp}{b}", need[b][1], FV, need[b][0]) if b in need else []
        post, fast = [], []
        if b in confirm:
            post += [f"s_waitcnt vmcnt({sum(len(v) for k, v in piece.items() if b - 2 < k < b)})", f"ds_write_b8 v{FLW}, v{PV}"]
            fast += [f"v_add_u32 v{PV}, 1, v{PV}"]
        post += sum((wpiece(grp, k) for k in piece.get(b, [])), [])
        if b + 1 in need:
            post += flag_read(FV, need[b + 1][0])
        if b in (9, 17):
            fast += [f"v_add_u32 v{AW1}, {2 * PAIR}, v{AW1}", f"v_add_u32 v{AW2}, {2 * PAIR}, v{AW2}"]
        o += block("N" if b < solo else role, b, 2 * (max(b - 2, 0) // 8), pre, post, fast,
                   pk="solo" if grp == "L" and b >= OPT["pk"] else grp == "E" and b < OPT["pke"])
        if b == 1:
            o += stamp("head")
    return o


XF = [BIAS, BIAS + 8, BOP, BOP + 8, BOP + 16, TMP + 8]
GAM = [ACC1, ACC1 + 8, TMP, W2F, TR, TMP + 16]


def gam_reads(cis):
    return [f"ds_read_b128 {vr(GAM[ci] + 4 * t, 4)}, v{AGAM} offset:{GAMOFF + 64 * ci + 16 * t}" for ci in cis for t in range(2)]


def mlp_tail(grp, role):
    hi = [f"v_and_b32 v{XF[ci] + 2 * j + 1}, 0xffff0000, v{XRES + 4 * ci + j}" for ci in range(6) for j in range(4)]
    pk = ["solo" if grp == "L" and b >= OPT["pk"] else False for b in range(25)]
    o = stamp("loop") + block(role, 22, 4, pk=pk[22])
    o += block(role, 23, 4, post=gam_reads([2, 3, 5]), fast=hi[:16], pk=pk[23])
    o += block(role, 24, 4, post=gam_reads([0, 1, 4]),
               fast=hi[16:] + [f"v_xor_b32 v{XRA}, 32, v{OW}"], pk=pk[24])
    return o


def epilogue(grp):
    lo = [f"v_lshlrev_b32 v{XF[ci] + 2 * j}, 16, v{XRES + 4 * ci + j}" for ci in range(6) for j in range(4)]
    o = ([f"s_setprio {OPT['eprio']}"] if OPT["eprio"] >= 0 else []) + ["s_waitcnt lgkmcnt(0)"] + S(25, lo)
    o += stamp("mlp")
    o += [f"s_mul_i32 s{SB}, s{WAVE}, 6144"]
    o += stamp("poll")
    for ci in range(6):
        if grp == "L" and OPT["pk"] <= 25:
            o += [f"v_pk_fma_f32 {vr(XF[ci] + j, 2)}, {vr(ACC2 + 8 * ci + j, 2)}, {vr(GAM[ci] + j, 2)}, {vr(XF[ci] + j, 2)}"
                  for j in range(0, 8, 2)]
        else:
            o += [f"v_fmac_f32 v{XF[ci] + j}, v{ACC2 + 8 * ci + j}, v{GAM[ci] + j}" for j in range(8)]
        o += [f"v_cvt_pk_bf16_f32 v{XRES + 4 * ci + j}, v{XF[ci] + 2 * j}, v{XF[ci] + 2 * j + 1}" for j in range(4)]
        o += [f"ds_write_b128 v{XRA if ci % 2 else OW}, {vr(XRES + 4 * ci, 4)} offset:{64 * (ci // 2)}"]
    o += [f"v_add_u32 v{WV2}, s{SB}, v{WV2}", f"s_add_u32 s{SA}, s{OBASE}, {ROWB}"]
    o += stamp("lds", True)
    for k in range(6):
        o += [f"ds_read_b128 {vr(ACC1 + 4 * k, 4)}, v{WV2} offset:{1024 * k}"]
    for k in range(6):
        o += [f"s_waitcnt lgkmcnt({5 - k})",
              f"buffer_store_dwordx4 {vr(ACC1 + 4 * k, 4)}, v{GO + k % 3}, s[{SO}:{SO + 3}], s{OBASE if k < 3 else SA} offen {OPT['snt']}"]
    if OPT["stamps"]:
        o += stamp("issued_st") + ["s_waitcnt vmcnt(0)"] + stamp("end")
        o += ["s_memrealtime s[96:97]", "s_getreg_b32 s98, hwreg(HW_REG_HW_ID)", "s_waitcnt lgkmcnt(0)",
              f"s_lshl_b32 s{SA}, s2, 3", f"s_add_u32 s{SA}, s{SA}, s{WAVE}", f"s_lshl_b32 s{SA}, s{SA}, 6",
              f"v_mov_b32 v1, s{SA}"]
        n = nstamp[0]
        for i in range(n):
            o += [f"v_mov_b32 v{16 + i}, s{STAMP + 2 * i}"]
        o += [f"v_mov_b32 v{16 + i}, 0" for i in range(n, 13)]
        o += ["v_mov_b32 v29, s100", "v_mov_b32 v30, s96", "v_mov_b32 v31, s98"]
        o += [f"global_store_dwordx4 v1, {vr(16 + 4 * i, 4)}, s[20:21] offset:{16 * i}" for i in range(4)]
    return o


def main():
    segs = {}
    segs["setup"] = setup()
    segs["pf"] = prefetch() if OPT["pf"] else []
    segs["issueE"] = issue_e() + addresses("E")
    segs["issueL"] = issue_l() + addresses("L")
    segs["fragsE"] = frags_e()
    segs["fragsL"] = frags_l()
    segs["preE"] = pre_e()
    segs["preL"] = pre_l()
    segs["convE"] = conv_e()
    segs["convL"] = conv_l()
    segs["lnE"] = layernorm_e()
    segs["lnL"] = layernorm_l()
    roles = {"E": OPT["roles"][0], "L": OPT["roles"][1]}
    for g in "EL":
        segs["main" + g] = mlp_main(g, roles[g])
        segs["tail" + g] = mlp_tail(g, roles[g])
    segs["epiE"] = epilogue("E") + ["s_endpgm"]
    segs["epiL"] = epilogue("L")
    traces = {
        "E": ["setup", "issueE", "fragsE", "preE", "convE", "lnE"],
        "L": ["setup", "pf", "issueL", "fragsL", "preL", "convL", "lnL"]}
    for g in "EL":
        traces[g] += ["main" + g, "tail" + g, "epi" + g]
    fix(segs, traces, verbose=bool(OPT.get("v")), lax=OPT["stamps"] and OPT["set"] == "cv")
    ref = open(f"cdna_kernels/{KN}.s.ref").read().split("\n")
    head = [l for l in ref if l.startswith(";") and "@launch" not in l]
    order = ["setup", "issueE", "fragsE", "preE", "convE", "lnE", "mainE", "tailE", "epiE",
             "issueL", "fragsL", "preL", "convL", "lnL", "mainL", "tailL", "epiL"]
    if OPT["lay"] == 1:
        segs["preE"] = segs["preE"] + ["s_branch L_convE"]
        segs["preL"] = segs["preL"] + ["s_branch L_convL"]
        segs["convL"] = ["L_convL:"] + segs["convL"]
        order = ["setup", "issueE", "fragsE", "preE", "issueL", "fragsL", "preL", "convE", "lnE", "mainE", "tailE", "epiE",
                 "convL", "lnL", "mainL", "tailL", "epiL"]
    segs["entry"] = ["s_branch L_start"] + segs["pf"] + ["L_start:"] if OPT["pfpos"] else []
    order = ["entry"] + order if OPT["pfpos"] else order[:order.index("issueL")] + ["pf"] + order[order.index("issueL"):]
    out = head + [f"; @launch grid=(200,1,1) block=(512,1,1) lds={LDS_BYTES}",
                  '.amdgcn_target "amdgcn-amd-amdhsa--gfx950"', ".text", f".globl {KN}_kernel", ".p2align 8",
                  f".type {KN}_kernel,@function", f"{KN}_kernel:"]
    for s in order:
        out += [f"; ---- {s}"] + [l if l.endswith(":") or l.startswith(".") else "    " + l.rstrip() for l in segs[s]]
    out += ["L_end:", "    s_endpgm", "L_codeend:",
            '.section .rodata,"a"', ".p2align 6", f".amdhsa_kernel {KN}_kernel",
            "  .amdhsa_next_free_vgpr 256", "  .amdhsa_next_free_sgpr 102", "  .amdhsa_accum_offset 256",
            "  .amdhsa_group_segment_fixed_size 0", "  .amdhsa_kernarg_size 80", "  .amdhsa_user_sgpr_count 2",
            "  .amdhsa_user_sgpr_kernarg_segment_ptr 1", "  .amdhsa_system_sgpr_workgroup_id_x 1",
            ".end_amdhsa_kernel"]
    open(sys.argv[1], "w").write("\n".join(out) + "\n")
    if OPT["stamps"]:
        open(sys.argv[1] + ".stamps", "w").write(" ".join(STAMPS))


if __name__ == "__main__":
    main()
```

```python
import re

TRANS = ("v_exp_f32", "v_rcp_f32", "v_rsq_f32", "v_log_f32", "v_sqrt_f32")


def regs(tok):
    tok = tok.strip().lstrip("-")
    if tok.startswith("abs(") or tok.startswith("|"):
        tok = tok.replace("abs(", "").replace(")", "").replace("|", "")
    m = re.fullmatch(r"([vsa])\[(\d+):(\d+)\]", tok)
    if m:
        return [(m.group(1), i) for i in range(int(m.group(2)), int(m.group(3)) + 1)]
    m = re.fullmatch(r"([vsa])(\d+)", tok)
    if m:
        return [(m.group(1), int(m.group(2)))]
    if tok == "vcc":
        return [("s", "vcc")]
    if tok == "m0":
        return [("s", "m0")]
    if tok == "exec":
        return [("s", "exec")]
    return []


class Ins:
    def __init__(self, text):
        self.text = text
        t = text.split(";")[0].strip()
        parts = t.split(None, 1)
        self.op = parts[0]
        rest = parts[1] if len(parts) > 1 else ""
        ops = [x.strip() for x in rest.split(",")]
        if ops:
            ops[-1] = ops[-1].split(" ")[0] if not ops[-1].startswith("hwreg") else ops[-1]
        self.mods = rest
        op = self.op
        self.kind = "other"
        self.w, self.r = [], []
        self.ab, self.c = [], []
        self.states = 1
        self.passes = 0
        R = [regs(o) for o in ops]
        if op.startswith("v_mfma") or op.startswith("v_smfmac"):
            self.kind = "mfma"
            self.passes = 8 if "32x32" in op else 4
            self.w = R[0]
            if op.startswith("v_smfmac"):
                self.ab = R[1] + R[2] + R[3]
                self.c = R[0]
            else:
                self.ab = R[1] + R[2]
                self.c = R[3]
            self.r = self.ab + self.c
        elif op.startswith("v_"):
            self.kind = "valu"
            base = op.replace("_e32", "").replace("_e64", "")
            self.trans = base in TRANS
            if base.startswith("v_permlane"):
                self.w = R[0] + R[1]
                self.r = R[0] + R[1]
            else:
                self.w = R[0]
                self.r = sum(R[1:], [])
                if base in ("v_fmac_f32",):
                    self.r += R[0]
        elif op.startswith("ds_read"):
            self.kind = "lds"
            self.w = R[0]
            self.r = R[1]
        elif op.startswith("ds_"):
            self.kind = "lds"
            self.r = sum(R, [])
        elif op.startswith("buffer_load") or op.startswith("global_load"):
            self.kind = "vmem"
            if re.search(r"\blds\b", rest):
                self.r = sum(R, []) + [("s", "m0")]
                self.dma = True
            else:
                self.w = R[0]
                self.r = sum(R[1:], [])
        elif op.startswith("buffer_store") or op.startswith("global_store"):
            self.kind = "vmem"
            self.r = sum(R, [])
            self.store = R[0] if op.startswith("buffer") else R[1]
        elif op == "s_nop":
            self.states = int(ops[0]) + 1
        elif op == "s_waitcnt":
            self.kind = "wait"
        elif op.startswith("s_load") or op.startswith("s_memtime") or op.startswith("s_memrealtime"):
            self.kind = "smem"
            self.w = R[0]
            self.r = sum(R[1:], [])
        elif op.startswith("s_cmp") or op.startswith("s_bitcmp") or op.startswith("s_cbranch") or op in (
                "s_branch", "s_barrier", "s_setprio", "s_endpgm", "s_sleep"):
            self.kind = "salu"
            self.r = sum(R, [])
        elif op.startswith("s_"):
            self.kind = "salu"
            self.w = R[0]
            self.r = sum(R[1:], [])


_CACHE = {}


def parsed(text):
    if text not in _CACHE:
        i = Ins(text)
        i.rs, i.ws = set(i.r), set(i.w)
        _CACHE[text] = i
    return _CACHE[text]


def is_ins(l):
    l = l.strip()
    return bool(l) and not l.startswith((";", ".")) and not l.endswith(":")


def check(lines, name=""):
    idx = [n for n, l in enumerate(lines) if is_ins(l)]
    ins = [parsed(lines[n]) for n in idx]
    errs = []
    short = []
    pos = []
    p = 0
    for i in ins:
        pos.append(p)
        p += i.states
    lgkm, vm = [], []
    for j, b in enumerate(ins):
        def dist(k):
            return pos[j] - pos[k] - ins[k].states

        def err(k, need, why):
            short.append((idx[j], need - dist(k), f"{name}: {why}: need {need} have {dist(k)}: {ins[k].text} -> {b.text}"))
        rb, wb = b.rs, b.ws
        for k in range(j - 1, max(-1, j - 24), -1):
            a = ins[k]
            d = dist(k)
            if d >= 20:
                break
            wa = a.ws
            if a.kind not in ("valu", "mfma", "salu", "vmem"):
                continue
            if a.kind == "valu":
                vw = {x for x in wa if x[0] != "s"}
                sw = {x for x in wa if x[0] == "s"}
                if b.kind == "mfma" and vw & rb and d < 2:
                    err(k, 2, "valu->mfma")
                if b.kind == "valu" and a.trans and not b.trans and vw & rb and d < 1:
                    err(k, 1, "trans->valu")
                if a.op.startswith("v_pk_") and b.kind == "valu" and vw & (rb | wb) and d < 1:
                    err(k, 1, "packed->valu")
                if a.op.startswith("v_dot") and b.op != a.op and vw & (rb | wb) and d < 3:
                    err(k, 3, "dot->other")
                if b.op.startswith("v_permlane") and vw & rb and d < 2:
                    err(k, 2, "valu->permlane")
                if b.op.startswith(("v_readfirstlane", "v_readlane")) and vw & rb and d < 1:
                    err(k, 1, "valu->readlane")
                if "dpp" in b.op and vw & rb and d < 2:
                    err(k, 2, "valu->dpp")
                if b.kind == "valu" and sw & rb and d < 2:
                    err(k, 2, "valu sgpr->valu")
                if b.kind == "vmem" and sw & rb and d < 5:
                    err(k, 5, "valu sgpr->vmem")
                if b.kind == "salu" and sw & rb and d < 1:
                    err(k, 1, "valu sgpr->salu")
            if a.kind == "mfma":
                n = {8: 12, 4: 8}[a.passes]
                if b.kind in ("valu", "lds", "vmem") and wa & (rb | wb) and d < n:
                    err(k, n, "mfma D->use")
                if b.kind == "mfma":
                    if wa & set(b.ab) and d < n:
                        err(k, n, "mfma D->AB")
                    if wa & set(b.c) and not (a.w == b.c and a.passes == b.passes) and d < n - 2:
                        err(k, n - 2, "mfma D->C partial")
                    if wa & wb and not (wa & set(b.c)) and d < n - 2:
                        err(k, n - 2, "mfma D->D waw")
                m = {8: 7, 4: 3}[a.passes]
                if b.kind == "valu" and set(a.c) & wb and d < m:
                    err(k, m, "mfma C war")
            if a.kind == "salu" and ("s", "m0") in wa and getattr(b, "dma", False) and d < 1:
                err(k, 1, "m0->dma")
            if a.kind == "vmem" and getattr(a, "store", None) and len(a.store) >= 3 and set(a.store) & wb and d < 2:
                err(k, 2, "store data war")
        touched = rb | wb
        for q, nm in ((lgkm, "lgkm"), (vm, "vm")):
            for k in q:
                if set(ins[k].w) & touched:
                    errs.append(f"{name}: pending {nm} result touched\n    {ins[k].text}\n    {b.text}")
        if b.kind == "wait":
            m = re.search(r"lgkmcnt\((\d+)\)", b.text)
            if m:
                n = int(m.group(1))
                if n > 0 and any(ins[k].kind == "smem" for k in lgkm):
                    errs.append(f"{name}: counted lgkmcnt with smem outstanding: {b.text}")
                del lgkm[:max(0, len(lgkm) - n)]
            m = re.search(r"vmcnt\((\d+)\)", b.text)
            if m:
                n = int(m.group(1))
                del vm[:max(0, len(vm) - n)]
        elif b.kind in ("lds", "smem"):
            lgkm.append(j)
        elif b.kind == "vmem":
            vm.append(j)
    return errs, short


def fix(segs, traces, verbose=False, lax=False):
    added = 0
    while True:
        changed = False
        for tname, tr, skip in [(k, v, sk) for k, v in traces.items() for sk in (False, True)]:
            lines, back = [], []
            for sname in tr:
                until = None
                for n, l in enumerate(segs[sname]):
                    if until is not None:
                        if l.strip() != until:
                            continue
                        until = None
                    lines.append(l)
                    back.append((sname, n))
                    m = re.match(r"s_cbranch_\w+ (\w+)", l.strip())
                    if skip and m and m.group(1) + ":" in [x.strip() for x in segs[sname][n + 1:]]:
                        until = m.group(1) + ":"
            errs, short = check(lines, tname)
            if errs and not lax:
                raise RuntimeError("\n".join(errs[:20]))
            if short:
                todo, last = [], -100
                for j in sorted({jj for jj, _, _ in short}):
                    if j - last > 30 and back[j] not in [back[x] for x, _ in todo]:
                        todo.append((j, max(d for jj, d, _ in short if jj == j)))
                        last = j
                for j, need in reversed(todo):
                    if verbose:
                        print("nop", need, [m for jj, _, m in short if jj == j][0])
                    sname, n = back[j]
                    segs[sname].insert(n, f"s_nop {need - 1}")
                    added += 1
                changed = True
                break
        if not changed:
            return added
```

```python
import math
import struct
import sys

from hazard import fix

KN = "standalone__modern_conv_block_convnext__vision"
OPT = dict(xnt="nt", snt="sc1", stamps=0, pf=1, roles="BA", set="all", al=0, shift=0, pairw=5, up=16, w0first=1, eprio=3, lconv=3, eln=2, xin=1, win=1, prerows=0, midrows=6, bf=3, sig3=3, solo=0, soloprio=0, pk=22, pke=4, pkn=2, pks=1, pkq=0, pfw=7, pfn=6, lay=0, pfpos=1, accmaj=0, depth=5, sig4=0, hand=7, hhi=0)
for a in sys.argv[2:]:
    k, v = a.split("=")
    OPT[k] = int(v) if v.lstrip("-").isdigit() else v


def f32(x):
    return "0x%08x" % struct.unpack("<I", struct.pack("<f", x))[0]


LOG2E = 1.4426950408889634
K1 = 2.0 * math.sqrt(2.0 / math.pi)
BETA = -((LOG2E * K1 * 0.044715) ** (1.0 / 3.0))
CGELU = LOG2E * K1 / -BETA

PAIR = 24576
XIMG = 3 * PAIR
SLOT = 6 * PAIR
DWT = SLOT
TAB = SLOT + 12288
FL = TAB + 2304
LDS_BYTES = FL + 64
B2OFF, GAMOFF = 1536, 1920
EX = XIMG + 12288
PART = [2 * PAIR, 3 * PAIR, SLOT]
XB = 224 * 224 * 192
ROWB = 224 * 192
BIG = 0x20000000

LANE, XV, WV1, IDX, AW1, AW2, ABI, XRA, OW, WV2, GO, AGAM, FLW, FLR = 0, 1, 2, 3, 4, 5, 6, 7, 8, 9, 10, 13, 14, 15
CACC, AF, BB, CP, EXW, EXR, BOPW, DG = 16, 64, 124, 240, 244, 245, 246, 248
ACC2, ACC1, BOP, W1F, W2F, GR, TR, BIAS, XRES, TMP = 16, 64, 96, 120, 144, 168, 176, 192, 208, 232
SX, SDW, SW1, SW2, ST, SO = 24, 28, 32, 36, 16, 40
P_B1, P_B2, P_GA = 4, 6, 8
WAVE, KQ, TY, TX, SROW, SM0, SA, SB, SC, OBASE, WG2, XK, WG1, WM0, ITER, SCALE = range(48, 64)
KONE, KC, STG = 4, 6, 10
STAMP = 64
nstamp = [0]


def stamp(name, drain=False, same=False):
    if not OPT["stamps"] or name not in STAMPSETS[OPT["set"]]:
        return []
    same = name in STAMPS
    if drain and OPT["set"] != "cv":
        return stamp(name) + ["s_waitcnt lgkmcnt(0)"]
    if same:
        n = STAMPS.index(name)
    else:
        n = nstamp[0]
        nstamp[0] += 1
        STAMPS.append(name)
    ins = "s_memrealtime" if OPT["stamps"] == 2 else "s_memtime"
    return [f"{ins} s[{STAMP + 2 * n}:{STAMP + 2 * n + 1}]"]


STAMPS = []
STAMPSETS = {
    "all": "start karg issued dw frags x conv ln mlp issued_st end".split(),
    "pro": "start karg issued addr landed tab dw frags x conv stats ln end".split(),
    "cv": "start x c0 c1 c2 conv sig stats l0 l1 l2 ln end".split(),
    "m2": "start x conv ln head loop mlp poll lds issued_st end".split(),
    "mlp": "start ln head it0 it1 it2 it3 it4 mlp poll lds issued_st end".split(),
}


def vr(b, n):
    return f"v[{b}:{b + n - 1}]"


def srd(base, size):
    return [f"s_mov_b32 s{base + 2}, {size}", f"s_mov_b32 s{base + 3}, 0x20000"]


def poll(name, ka=None, kb=None, tmp=None, addr=FLR):
    def chk(reg, k):
        k = k if isinstance(k, str) else hex((0x80 - k) * 0x01010101)
        return [f"v_readfirstlane_b32 s{SA}, v{reg}", f"s_add_u32 s{SA}, s{SA}, {k}",
                f"s_andn2_b32 s{SA}, 0x80808080, s{SA}", f"s_cbranch_scc1 {name}"]
    if ka is not None and kb is not None:
        return [f"{name}:", f"ds_read_b64 {vr(tmp, 2)}, v{FLR}", "s_waitcnt lgkmcnt(0)"] + chk(tmp, ka) + chk(tmp + 1, kb)
    off = 0 if kb is None else 4
    return [f"{name}:", f"ds_read_b32 v{tmp}, v{addr} offset:{off}", "s_waitcnt lgkmcnt(0)"] + chk(tmp, kb if off else ka)


def recheck(name, k, tmp, late=True, addr=FLR):
    kk = k if isinstance(k, str) else hex((0x80 - k) * 0x01010101)
    return [f"v_readfirstlane_b32 s{SA}, v{tmp}", f"s_add_u32 s{SA}, s{SA}, {kk}",
            f"s_andn2_b32 s{SA}, 0x80808080, s{SA}", f"s_cbranch_scc0 {name}_ok"] + (
                poll(name, None, k, tmp) if late else poll(name, k, None, tmp, addr)) + [f"{name}_ok:"]


def flag_read(tmp, late=True):
    return [f"ds_read_b32 v{tmp}, v{FLR} offset:{4 if late else 0}"]


def signal(stage, tmp):
    return [f"v_mov_b32 v{tmp}, {stage}", f"ds_write_b8 v{FLW}, v{tmp}"]


def kflag(k):
    return hex((0x80 - k) * 0x01010101)


def flag_reset():
    return [f"v_mov_b32 v{FLR}, {FL}", f"v_mov_b32 v{IDX}, 0", f"v_add_u32 v{FLW}, s{WAVE}, v{FLR}",
            f"ds_write_b8 v{FLW}, v{IDX}", f"ds_write_b8 v{FLW}, v{IDX} offset:4"]


def setup():
    o = stamp("start")
    o += [f"s_load_dwordx2 s[{SX}:{SX + 1}], s[0:1], 0",
          f"v_readfirstlane_b32 s{WAVE}, v0",
          f"s_and_b32 s{SA}, s2, 7", f"s_lshr_b32 s{SB}, s2, 3", f"s_mul_i32 s{SA}, s{SA}, 28",
          f"s_cmp_ge_u32 s2, 224", "s_cbranch_scc1 L_end",
          f"s_add_u32 s{SA}, s{SA}, s{SB}",
          f"s_lshr_b32 s{WAVE}, s{WAVE}, 6",
          f"v_and_b32 v{LANE}, 63, v0",
          f"s_mul_hi_u32 s{TY}, s{SA}, 0x12492493",
          f"s_and_b32 s{KQ}, s{WAVE}, 3",
          f"s_mul_i32 s{SB}, s{TY}, 14", f"s_sub_u32 s{TX}, s{SA}, s{SB}",
          f"s_cmp_lt_u32 s{WAVE}, 4", "s_cbranch_scc0 L_issueL"]
    if OPT["pf"]:
        k = o.index(f"v_readfirstlane_b32 s{WAVE}, v0") + 1
        o[k:k] = [f"s_lshr_b32 s{SC}, s2, 3", f"s_cmp_ge_u32 s{WAVE}, {64 * OPT['pfw']}",
                  f"s_cselect_b32 s{SB}, s{SC}, 63", f"s_cmp_lt_u32 s{SB}, {OPT['pfn']}", "s_cbranch_scc1 L_pf", "L_pfdone:"]
    return o


def prefetch():
    nw = 8 - OPT["pfw"]
    return ["L_pf:", "s_getpc_b64 s[14:15]", "L_pc:", f"v_subrev_u32 v{PFV}, {64 * OPT['pfw']}, v0",
            f"s_mul_i32 s{SC}, s{SC}, {8192 * nw}", f"v_lshl_add_u32 v{PFV}, v{PFV}, 7, s{SC}",
            f"v_min_u32 v{PFV}, L_codeend-{KN}_kernel-4, v{PFV}", f"s_sub_u32 s14, s14, L_pc-{KN}_kernel",
            "s_subb_u32 s15, s15, 0", f"global_load_dword v{PFV}, v{PFV}, s[14:15]", "s_branch L_pfdone"]


def more_args():
    o = [f"s_load_dwordx2 s[{SW1}:{SW1 + 1}], s[0:1], 16",
         f"s_load_dwordx2 s[{SW2}:{SW2 + 1}], s[0:1], 32",
         f"s_load_dwordx2 s[{SO}:{SO + 1}], s[0:1], 56"]
    if OPT["stamps"]:
        o += ["s_load_dwordx2 s[20:21], s[0:1], 72", "s_memrealtime s[100:101]"]
    if OPT.get("dump"):
        o += ["s_load_dwordx2 s[20:21], s[0:1], 72", "s_waitcnt lgkmcnt(0)", "s_add_u32 s20, s20, 4096", "s_addc_u32 s21, s21, 0"]
    return o


def xrow(r):
    return [f"s_add_u32 m0, s{SM0}, {3840 * r}", f"s_add_u32 s{SA}, s{SROW}, {ROWB * r}",
            f"buffer_load_dwordx4 v{XV}, s[{SX}:{SX + 3}], s{SA} offen {OPT['xnt']} lds"]


AP, MASK, PFV, SETT, PP = BB, BB + 4, BB + 100, BB + 18, BB + 32
PAF, PBB, PCP = 28, 220, 252
PMASK, TABV, PSET = PBB + 4, PBB + 8, PBB + 16


def xaddr_dma(a):
    b, c = a + 1, a + 2
    o = [f"v_mul_u32_u24 v{a}, 43, v{LANE}", f"s_mul_i32 s{SB}, s{KQ}, 5", f"v_lshrrev_b32 v{a}, 9, v{a}",
         f"v_mul_u32_u24 v{b}, 12, v{a}", f"v_add_u32 v{a}, s{SB}, v{a}", f"v_sub_u32 v{b}, v{LANE}, v{b}",
         f"s_lshl_b32 s{SB}, s{TX}, 4", f"v_bfe_u32 v{c}, v{a}, 2, 2", f"s_sub_u32 s{SB}, s{SB}, 2",
         f"v_xor_b32 v{b}, v{b}, v{c}", f"v_add_u32 v{a}, s{SB}, v{a}",
         f"v_min_u32 v{a}, 0xe0, v{a}", f"v_add_u32 v{c}, 32, v{a}", f"v_lshrrev_b32 v{c}, 8, v{c}",
         f"v_mul_u32_u24 v{a}, 0xc0, v{a}", f"v_lshl_add_u32 v{a}, v{b}, 4, v{a}",
         f"v_lshl_add_u32 v{XV}, v{c}, 29, v{a}",
         f"s_mul_i32 s{SROW}, s{TY}, {14 * ROWB}", f"s_sub_u32 s{SROW}, s{SROW}, {2 * ROWB}",
         f"s_mul_i32 s{SM0}, s{KQ}, 960", f"s_add_u32 s{SM0}, s{SM0}, {XIMG}"]
    return o + srd(SX, XB)


M60, MFULL = ["s_bfm_b64 exec, 60, 0"], ["s_mov_b64 exec, -1"]


def issue_e():
    a, b = PSET + 3, PSET + 4
    o = ["s_setprio 3", f"s_load_dwordx2 s[{SDW}:{SDW + 1}], s[0:1], 8",
         f"s_load_dwordx2 s[{P_B1}:{P_B1 + 1}], s[0:1], 24",
         f"s_load_dwordx2 s[{P_B2}:{P_B2 + 1}], s[0:1], 40",
         f"s_load_dwordx2 s[{P_GA}:{P_GA + 1}], s[0:1], 48",
         f"v_lshlrev_b32 v{WV2}, 4, v{LANE}",
         f"s_lshl_b32 s{SB}, s{KQ}, 11", f"s_sub_u32 s{SC}, s{SB}, 960", f"v_add_u32 v{a}, s{SC}, v{WV2}",
         f"v_add_u32 v{b}, 0x400, v{a}", f"s_add_u32 m0, s{SB}, {DWT}"] + srd(SDW, 4800) + xaddr_dma(PSET)
    o += [f"s_mov_b32 s{ST + 3}, 0x20000",
          f"s_cmp_lt_u32 s{KQ}, 2", f"s_movk_i32 s{ST + 2}, 192", f"s_cmov_b32 s{ST + 2}, 768",
          f"s_cselect_b32 s{SC}, s{KQ}, 0", f"s_lshl_b32 s{SC}, s{SC}, 9",
          f"v_lshl_add_u32 v{TABV + 2}, v{LANE}, 3, s{SC}",
          f"s_cmp_eq_u32 s{TY}, 0", f"s_cselect_b32 s{SB}, {BIG}, s{SROW}", "s_waitcnt lgkmcnt(0)"] + stamp("karg")
    o += [f"buffer_load_dwordx4 v{a}, s[{SDW}:{SDW + 3}], 0 offen lds",
          f"s_add_u32 m0, m0, 0x400",
          f"s_cmp_eq_u32 s{KQ}, 2", f"s_cselect_b64 s[{ST}:{ST + 1}], s[{P_B2}:{P_B2 + 1}], s[{P_B1}:{P_B1 + 1}]",
          f"buffer_load_dwordx4 v{b}, s[{SDW}:{SDW + 3}], 0 offen lds",
          f"s_cmp_eq_u32 s{KQ}, 3", f"s_cselect_b64 s[{ST}:{ST + 1}], s[{P_GA}:{P_GA + 1}], s[{ST}:{ST + 1}]",
          f"s_mov_b32 s{SCALE}, {f32(BETA)}", f"s_cmov_b32 s{SCALE}, {f32(1.0 / BETA)}",
          f"s_mov_b32 m0, s{SM0}",
          f"buffer_load_dwordx2 {vr(TABV, 2)}, v{TABV + 2}, s[{ST}:{ST + 3}], 0 offen"] + M60
    o += [f"buffer_load_dwordx4 v{XV}, s[{SX}:{SX + 3}], s{SB} offen {OPT['xnt']} lds",
          f"s_add_u32 m0, s{SM0}, 3840", f"s_add_u32 s{SB}, s{SB}, {ROWB}",
          f"buffer_load_dwordx4 v{XV}, s[{SX}:{SX + 3}], s{SB} offen {OPT['xnt']} lds"] + more_args()
    for r in range(2, 12):
        o += xrow(r)
    o += MFULL + flag_reset()
    return o


def issue_l():
    o = ["L_issueL:"] + more_args() + [f"v_lshlrev_b32 v{WV2}, 4, v{LANE}"] + xaddr_dma(SETT)
    o += flag_reset() + stamp("karg")
    return o


def wpiece(grp, k):
    if grp == "E":
        o = [f"s_add_u32 m0, s{WM0}, {1024 * k}", f"s_add_u32 s{SA}, s{WG1}, {6144 * k}",
             f"buffer_load_dwordx4 v{WV1}, s[{SW1}:{SW1 + 3}], s{SA} offen lds"]
        return o + [f"s_add_u32 s{WM0}, s{WM0}, {PAIR}", f"s_add_u32 s{WG1}, s{WG1}, 128"] * (k == 2)
    o = [f"s_mov_b32 m0, s{WM0}", f"s_add_u32 s{WM0}, s{WM0}, {PAIR}"] * (k == 0)
    o += [f"buffer_load_dwordx4 v{WV2}, s[{SW2}:{SW2 + 3}], s{WG2} offen offset:{1024 * k} lds"]
    return o + [f"s_add_u32 s{WG2}, s{WG2}, 12288"] * (k == 2)


def wdma(pairs, w1=True, w2=True):
    o = []
    for p in pairs:
        for i in range(3 * w1):
            o += [f"s_add_u32 m0, s{WM0}, {PAIR * p + 1024 * i}", f"s_add_u32 s{SA}, s{WG1}, {128 * p + 6144 * i}",
                  f"buffer_load_dwordx4 v{WV1}, s[{SW1}:{SW1 + 3}], s{SA} offen lds"]
        if not w2:
            continue
        o += [f"s_add_u32 m0, s{WM0}, {PAIR * p + 12288}", f"s_add_u32 s{SA}, s{WM0}, {12288 * p}"]
        o += [f"buffer_load_dwordx4 v{WV2}, s[{SW2}:{SW2 + 3}], s{SA} offen offset:{1024 * i} lds" for i in range(3)]
    return o


def addresses(grp):
    o = stamp("issued")
    E = grp == "E"
    n, g, hf, s, rho, c, t, u, w = ((PSET if E else SETT) + 5 + i for i in range(9))
    ap, mask, cp = (PBB, PMASK, PCP) if E else (AP, MASK, CP)
    o += [f"v_and_b32 v{n}, 15, v{LANE}", f"v_lshrrev_b32 v{g}, 4, v{LANE}", f"v_lshrrev_b32 v{hf}, 5, v{LANE}",
          f"v_and_b32 v{s}, 1, v{g}", f"v_bfe_u32 v{rho}, v{LANE}, 2, 2", f"v_and_b32 v{c}, 3, v{LANE}"]
    o += [f"v_bfe_u32 v{t}, v{LANE}, 2, 3", f"v_mul_u32_u24 v{t}, 0x300, v{t}",
          f"v_lshl_add_u32 v{t}, v{hf}, 6, v{t}", f"v_lshl_add_u32 v{WV1}, v{c}, 4, v{t}",
          f"s_mul_i32 s{WM0}, s{KQ}, 3072", f"s_mul_i32 s{WG1}, s{KQ}, 18432"]
    o += srd(SW1, 73728) + srd(SW2, 73728) * (not E) + srd(SO, XB)
    o += [f"v_mul_u32_u24 v{IDX}, 0x5555, v{c}"]
    o += [f"v_and_b32 v{t}, 2, v{c}", f"v_and_b32 v{u}, 1, v{c}", f"v_mul_u32_u24 v{u}, 960, v{u}",
          f"v_lshlrev_b32 v{t}, 2, v{t}", f"v_lshl_add_u32 v{t}, v{rho}, {4 if E else 6}, v{t}",
          f"v_sub_u32 v{t}, v{t}, v{u}"]
    if E:
        o += [f"v_add_u32 v{t}, {DWT + 960}, v{t}"]
        tabs = [[0, 2, 10, 12], [20, 22, 1, 3], [11, 13, 21, 23], [4, 14, 24, 30]]
    else:
        o += [f"s_lshl_b32 s{SA}, s{KQ}, 4", f"s_add_u32 s{SA}, s{SA}, {DWT + 960}", f"v_add_u32 v{t}, s{SA}, v{t}"]
        tabs = [[0, 2, 1, 3], [4, 14, 24, 30], [30, 4, 14, 24]]
    o += [f"v_lshlrev_b32 v{w}, 3, v{g}", f"s_movk_i32 s{SB}, 0xc0"]
    for q, tab in enumerate(tabs):
        cst = sum(v << (8 * i) for i, v in enumerate(tab))
        o += [f"s_mov_b32 s{SA}, {cst}", f"v_bfe_u32 v{ap + q}, s{SA}, v{w}, 8",
              f"v_mad_u32_u24 v{ap + q}, v{ap + q}, s{SB}, v{t}"]
    o += [f"v_bfe_i32 v{t}, v{LANE}, 3, 1", f"v_lshrrev_b32 v{mask + 2}, 16, v{t}",
          f"v_and_b32 v{mask + 3}, 0xffff0000, v{t}", f"v_xor_b32 v{mask}, 0xffff, v{mask + 2}",
          f"v_xor_b32 v{mask + 1}, 0xffff0000, v{mask + 3}"]

    def xaddr(dst, col, row, extra):
        return ([f"v_bfe_u32 v{t}, v{col}, 2, 2"] + [f"v_xor_b32 v{t}, {extra}, v{t}"] * bool(extra)
                + [f"v_mul_u32_u24 v{u}, 0xc0, v{col}", f"v_lshl_add_u32 v{t}, v{t}, 4, v{u}",
                   f"v_mul_u32_u24 v{u}, 0xf00, v{row}", f"v_add3_u32 v{dst}, v{t}, v{u}, s{SB}"])
    swz = "" if E else f"s{KQ}"
    o += [f"s_mul_i32 s{SB}, s{KQ}, 7680", f"s_add_u32 s{SB}, s{SB}, {XIMG}"] if E else [f"s_mov_b32 s{SB}, {XIMG + 30720}"]
    o += [f"v_lshl_add_u32 v{w}, v{hf}, 1, v{n}"] + xaddr(cp, w, s, swz)
    o += [f"v_add_u32 v{w}, 1, v{w}"] + xaddr(cp + 1, w, s, swz)
    o += [f"v_add_u32 v{w}, 4, v{n}"] + xaddr(cp + 2, w, g, swz)
    o += [f"v_mul_u32_u24 v{u}, 7680, v{hf}", f"v_sub_u32 v{u}, v{cp + 2}, v{u}",
          f"v_add_u32 v{cp + 3}, {15360 if E else 30720}, v{u}"]
    o += [f"s_mul_i32 s{SB}, s{WAVE}, 7680", f"s_add_u32 s{SB}, s{SB}, {XIMG + 7680}",
          f"v_add_u32 v{w}, 2, v{n}"] + xaddr(XRA, w, s, f"v{hf}")
    if not E:
        o += [f"s_lshl_b32 s{SA}, s{KQ}, 9", f"s_add_u32 s{SA}, s{SA}, {EX}", f"v_lshl_add_u32 v{EXW}, v{LANE}, 3, s{SA}",
              f"s_mul_i32 s{SA}, s{KQ}, 5632", f"s_cmp_eq_u32 s{KQ}, 3", f"s_cmov_b32 s{SA}, -1536",
              f"v_add_u32 v{EXR}, s{SA}, v{EXW}",
              f"s_mul_i32 s{SA}, s{KQ}, 6144", f"s_add_u32 s{SA}, s{SA}, {SLOT - 6144}", f"v_add_u32 v{BOPW}, s{SA}, v{WV2}"]
        o += [f"v_and_b32 v{t}, 1, v{c}", f"v_lshlrev_b32 v{t}, 4, v{t}", f"s_movk_i32 s{SA}, 0x3f80",
              f"v_lshlrev_b32_e64 v{SETT}, v{t}, s{SA}",
              f"v_xor_b32 v{t}, v{rho}, v{hf}", f"v_and_b32 v{t}, 1, v{t}", f"v_xor_b32 v{t}, 1, v{t}",
              f"v_bfe_u32 v{u}, v{LANE}, 3, 2", f"v_lshrrev_b32 v{w}, 1, v{c}", f"v_lshl_add_u32 v{u}, v{u}, 1, v{w}",
              f"v_lshlrev_b32 v{t}, v{u}, v{t}"]
        o += [f"v_bfe_i32 v{DG + i}, v{t}, {i}, 1" for i in range(8)]
        o += [f"v_and_b32 v{DG + i}, v{DG + i}, v{SETT}" for i in range(8)]
    o += [f"v_lshl_add_u32 v{t}, v{hf}, 2, v{rho}", f"v_lshlrev_b32 v{u}, 5, v{s}",
          f"v_lshl_add_u32 v{w}, v{c}, 3, v{u}", f"v_lshl_add_u32 v{AW1}, v{t}, 6, v{w}",
          f"v_mul_u32_u24 v{t}, 0xc0, v{t}", f"v_and_b32 v{w}, 1, v{c}", f"v_lshl_add_u32 v{u}, v{w}, 4, v{u}",
          f"v_lshrrev_b32 v{w}, 1, v{c}", f"v_lshl_add_u32 v{u}, v{w}, 3, v{u}", f"v_add_u32 v{AW2}, v{t}, v{u}",
          f"v_lshlrev_b32 v{t}, 4, v{hf}", f"v_add_u32 v{ABI}, {TAB}, v{t}",
          f"v_add_u32 v{AGAM}, v{ABI}, v{t}"]
    if E:
        o += [f"s_mul_i32 s{STG}, s{KQ}, 6144", f"s_cmp_lt_u32 s{KQ}, 2",
              f"s_cselect_b32 s{SA}, 0, {PAIR - 12288}", f"s_add_u32 s{STG}, s{STG}, s{SA}",
              f"s_add_u32 s{STG}, s{STG}, {2 * PAIR + 12288}"]
    else:
        o += [f"s_mov_b32 s{STG}, {PART[0]}", f"s_cmp_eq_u32 s{KQ}, 1", f"s_cmov_b32 s{STG}, {PART[1]}",
              f"s_cmp_eq_u32 s{KQ}, 2", f"s_cmov_b32 s{STG}, {PART[2]}"]
    o += [f"v_bfe_u32 v{t}, v{n}, 1, 2", f"v_xor_b32 v{t}, v{t}, v{hf}", f"v_and_b32 v{u}, 31, v{LANE}",
          f"v_mul_u32_u24 v{u}, 0xc0, v{u}", f"v_lshl_add_u32 v{t}, v{t}, 4, v{u}", f"v_add_u32 v{OW}, s{STG}, v{t}"]
    for k in range(3):
        o += [f"v_add_u32 v{t}, {64 * k}, v{LANE}", f"v_mul_u32_u24 v{u}, 171, v{t}",
              f"v_bfe_u32 v{u}, v{u}, 12, 2", f"v_xor_b32 v{t}, v{t}, v{u}", f"v_lshlrev_b32 v{GO + k}, 4, v{t}"]
    o += [f"s_mul_i32 s{SA}, s{TY}, 14", f"s_lshl_b32 s{SB}, s{WAVE}, 1", f"s_add_u32 s{SA}, s{SA}, s{SB}",
          f"s_mul_i32 s{SA}, s{SA}, {ROWB}", f"s_mul_i32 s{SB}, s{TX}, 3072", f"s_add_u32 s{OBASE}, s{SA}, s{SB}"]
    o += [f"v_mov_b32 v{CACC + i}, 0" for i in range(48) if (i < 12 if E else i % 16 < 12)]
    o += stamp("addr")
    return o


def paf(b, ac, q):
    return PAF + 48 * (0, 3, 1, 2)[b] + 16 * ac + 4 * q


def frags_e():
    o = ["s_waitcnt vmcnt(13) lgkmcnt(0)", "s_barrier"] + stamp("dw", True)
    items = [(ac, q, pp) for ac in range(3) for q in range(4) for pp in range(2)]

    def rd(k):
        ac, q, pp = items[k]
        return [f"ds_read_b64_tr_b16 {vr(paf(3, ac, q) + 2 * pp, 2)}, v{PBB + q} offset:{960 * pp + 64 * ac}"]
    for k in range(12):
        o += rd(k)
    for k, (ac, q, pp) in enumerate(items):
        if k % 4 == 0:
            o += [f"s_waitcnt lgkmcnt({min(8, 20 - k)})"]
            for kk in range(k + 12, min(k + 16, 24)):
                o += rd(kk)
        p = paf(3, ac, q) + 2 * pp
        for b in range(4):
            for g in range(2):
                o += [f"v_and_b32 v{paf(b, ac, q) + 2 * pp + g}, v{p + b // 2}, v{PMASK + 2 * g + b % 2}"]
    return o + stamp("frags")


def af(a, f):
    return AF + 20 * a + 4 * f


def frags_l():
    pre, mid = OPT["prerows"], OPT["midrows"]
    o = ["s_waitcnt lgkmcnt(0)"]
    if pre:
        o += M60 + sum((xrow(r) for r in range(12, 12 + pre)), []) + MFULL
    o += ["s_barrier"] + stamp("dw", True)
    for f in range(5):
        for pp in range(2):
            o += [f"ds_read_b64_tr_b16 {vr(PP + 4 * f + 2 * pp, 2)}, v{AP + max(f - 2, 0)} "
                  f"offset:{960 * pp + (1920 * f if f < 3 else 0)}"]
    o += M60 + sum((xrow(r) for r in range(12 + pre, 12 + mid)), []) + MFULL
    for f in range(5):
        o += [f"s_waitcnt lgkmcnt({8 - 2 * f})"]
        for pp in range(2):
            for a in range(3):
                for g in range(2):
                    o += [f"v_and_b32 v{af(a, f) + 2 * pp + g}, v{PP + 4 * f + 2 * pp + a // 2}, v{MASK + 2 * g + a % 2}"]
    o += stamp("frags")
    return o


def pre_l():
    o = ["s_barrier"] + M60 + sum((xrow(r) for r in range(12 + OPT["midrows"], 18)), []) + MFULL
    o += wdma([0, 1, 2]) + stamp("tab")
    o += [f"s_add_u32 s{WG2}, s{WM0}, {3 * 12288}", f"s_add_u32 s{WM0}, s{WM0}, {3 * PAIR + 12288}"]
    o += ["s_waitcnt vmcnt(18)", "s_setprio 3"] + signal(2, SETT)
    return o + poll("L_pollRows", None, 2, SETT + 2) + [f"s_setprio {OPT['lconv']}"]


def pre_e():
    a = TABV
    o = [f"s_lshl_b32 s{SA}, s{KQ}, 10", f"s_movk_i32 s{SB}, 24", f"s_cmp_eq_u32 s{KQ}, 2", f"s_cmov_b32 s{SA}, {B2OFF}",
         f"s_cmp_eq_u32 s{KQ}, 3", f"s_cmov_b32 s{SA}, {GAMOFF}", f"s_cmp_eq_u32 s{KQ}, 1", f"s_cmov_b32 s{SB}, 32",
         f"s_bfm_b64 s[14:15], s{SB}, 0", f"s_cmp_eq_u32 s{KQ}, 0", "s_cmov_b64 s[14:15], -1",
         f"s_add_u32 s{SA}, s{SA}, {TAB}", f"v_add_u32 v{a + 2}, s{SA}, v{WV2}",
          "s_waitcnt vmcnt(12)",
          f"v_lshlrev_b32 v{a + 4}, 16, v{a}", f"v_and_b32 v{a + 5}, 0xffff0000, v{a}",
          f"v_lshlrev_b32 v{a + 6}, 16, v{a + 1}", f"v_and_b32 v{a + 7}, 0xffff0000, v{a + 1}"]
    o += [f"v_mul_f32 v{a + 4 + i}, s{SCALE}, v{a + 4 + i}" for i in range(4)]
    o += ["s_mov_b64 exec, s[14:15]", f"ds_write_b128 v{a + 2}, {vr(a + 4, 4)}", "s_mov_b64 exec, -1",
          f"s_add_u32 s{WM0}, s{WM0}, {3 * PAIR}", f"s_add_u32 s{WG1}, s{WG1}, 384",
          "s_waitcnt vmcnt(0) lgkmcnt(0)"]
    return o + stamp("tab") + ["s_barrier"]


FV, PV = LANE, IDX


class LdsQueue:
    def __init__(self):
        self.n = 0
        self.done = 0

    def issue(self, lines):
        self.n += sum(l.startswith("ds_") for l in lines)
        return lines

    def wait(self, upto):
        if upto <= self.done:
            return []
        self.done = upto
        assert self.n - upto <= 15
        return [f"s_waitcnt lgkmcnt({self.n - upto})"]


NEG, SUMD = AF + 16, TR


def cacc(a, t):
    return CACC + 16 * a + 4 * t


LS, LQ = [PAF + 44, PAF + 45], [PAF + 46, PAF + 47]


def stats(b):
    o = []
    for j in range(12):
        v = CACC + 12 * b + j
        if b == 0 and j < 2:
            o += [f"v_add_f32 v{LS[j]}, v{v}, v{v + 2}", f"v_mul_f32 v{LQ[j]}, v{v}, v{v}"]
        elif b == 0 and j < 4:
            o += [f"v_fmac_f32 v{LQ[j % 2]}, v{v}, v{v}"]
        else:
            o += [f"v_add_f32 v{LS[j % 2]}, v{LS[j % 2]}, v{v}", f"v_fmac_f32 v{LQ[j % 2]}, v{v}, v{v}"]
    return o


def conv_e():
    o = ["L_convE:"] + stamp("x", True)
    steps = [(b, q, ac) for b in range(4) for q in range(4) for ac in range(3)]
    pool = [PBB + 8 * k for k in range(4)]
    extra = {11: [PAF + 36], 23: [paf(1, 0, 0), paf(1, 0, 2)], 35: [paf(2, 0, 0), paf(2, 0, 2)]}
    xres = [f"ds_read_b128 {vr(XRES + 8 * a, 4)}, v{XRA} offset:{64 * a}" for a in range(3)]
    xres += [f"v_xor_b32 v{XRA}, 32, v{XRA}"]
    xres += [f"ds_read_b128 {vr(XRES + 8 * a + 4, 4)}, v{XRA} offset:{64 * a}" for a in range(3)]
    buf, mark = {}, {}
    lq = LdsQueue()

    def reads(nn):
        b, q, ac = steps[nn]
        buf[nn] = pool.pop(0)
        r = []
        for hb in range(2):
            i = 2 * q + hb
            pat, off = [(0, 7680 * i), (1, 7680 * (i - 3)), (i - 4, 0)][min(i // 3, 2)]
            if b and ac == 0 and i in (0, 3, 6, 7):
                r += [f"v_xor_b32 v{PCP + pat}, {16 * (b ^ (b - 1))}, v{PCP + pat}"]
            r += [f"ds_read_b128 {vr(buf[nn] + 4 * hb, 4)}, v{PCP + pat} offset:{off + 64 * ac}"]
        lq.issue(r)
        mark[nn] = lq.n
        return r
    issued = 0
    while pool:
        o += reads(issued)
        issued += 1
    for nn, (b, q, ac) in enumerate(steps):
        if lq.done < mark[nn]:
            o += lq.wait(mark[min(nn + (issued - nn >= OPT["pairw"]), 47)])
        o += [f"v_smfmac_f32_16x16x64_bf16 {vr(CACC + 12 * b + 4 * ac, 4)}, {vr(paf(b, ac, q), 4)}, "
              f"{vr(buf[nn], 8)}, v{IDX}"]
        pool += [buf[nn]] + extra.get(nn, [])
        if nn >= 35:
            pool[:] = [p for p in pool if p not in (PBB, PBB + 8)]
        if nn == 44:
            assert all(buf[k] not in (PBB, PBB + 8) for k in range(45, 48))
            o += lq.issue(xres + signal(6, FV + 1))
        if nn in (11, 23, 35):
            o += stamp(f"c{nn // 12}")
        while pool and issued < 48 and issued - nn <= OPT["depth"]:
            o += reads(issued)
            issued += 1
        k = 3 * q + ac
        if b == 0 and q == 3:
            o += [f"v_mov_b32 v{CACC + 12 + 4 * ac + i}, 0" for i in range(4)]
        if b in (1, 2) and k < 9:
            o += [f"v_mov_b32 v{CACC + 12 * (b + 1) + i}, 0" for i in range(12 * k // 9, 12 * (k + 1) // 9)]
        if b and k >= 2 and not OPT["pks"]:
            st = stats(b - 1)
            o += st[len(st) * (k - 2) // 10:len(st) * (k - 1) // 10]
    return o + stamp("conv", True)


def layernorm_e():
    def cv(cg, r):
        return CACC + 12 * (cg % 4) + 4 * (cg // 4) + r
    s, q = LS, LQ
    dd = ["s_waitcnt lgkmcnt(0)"] + recheck("L_pollW0", 3, FV) + D(STE, -1) + [f"s_setprio {OPT['eln']}"]
    o = []
    if OPT["pks"]:
        a, b = TMP + 2, TMP + 4
        o += [f"v_pk_add_f32 {vr(s[0], 2)}, {vr(CACC, 2)}, {vr(CACC + 2, 2)}", f"v_pk_mul_f32 {vr(q[0], 2)}, {vr(CACC, 2)}, {vr(CACC, 2)}",
              f"v_pk_add_f32 {vr(a, 2)}, {vr(CACC + 4, 2)}, {vr(CACC + 6, 2)}", f"v_pk_mul_f32 {vr(b, 2)}, {vr(CACC + 2, 2)}, {vr(CACC + 2, 2)}"]
        for j in range(4, 48, 2):
            sa, qa = (s[0], q[0]) if j % 4 == 0 else (a, b)
            if j == 24:
                o += flag_read(FV)
            if j >= 8:
                o += [f"v_pk_add_f32 {vr(sa, 2)}, {vr(sa, 2)}, {vr(CACC + j, 2)}"]
            o += [f"v_pk_fma_f32 {vr(qa, 2)}, {vr(CACC + j, 2)}, {vr(CACC + j, 2)}, {vr(qa, 2)}"]
        o += [f"v_pk_add_f32 {vr(s[0], 2)}, {vr(s[0], 2)}, {vr(a, 2)}", f"v_pk_add_f32 {vr(q[0], 2)}, {vr(q[0], 2)}, {vr(b, 2)}"]
    else:
        o += flag_read(FV) + stats(3)
    o += stamp("l0") + dd + stamp("l1")
    o += [f"v_add_f32 v{s[0]}, v{s[0]}, v{s[1]}", f"v_add_f32 v{q[0]}, v{q[0]}, v{q[1]}",
          f"v_mov_b32 v{s[1]}, v{s[0]}", f"v_mov_b32 v{q[1]}, v{q[0]}",
          f"v_permlane32_swap_b32 v{s[0]}, v{s[1]}", f"v_permlane32_swap_b32 v{q[0]}, v{q[1]}",
          f"v_add_f32 v{s[0]}, v{s[0]}, v{s[1]}", f"v_add_f32 v{q[0]}, v{q[0]}, v{q[1]}",
          f"v_mul_f32 v{s[0]}, {f32(1 / 96)}, v{s[0]}", f"v_mul_f32 v{q[0]}, {f32(1 / 96)}, v{q[0]}",
          f"v_fma_f32 v{q[0]}, -v{s[0]}, v{s[0]}, v{q[0]}", f"v_max_f32 v{q[0]}, 0, v{q[0]}",
          f"v_add_f32 v{q[0]}, {f32(1e-5)}, v{q[0]}", f"v_rsq_f32 v{TMP + 1}, v{q[0]}",
          f"v_mul_f32 v{TMP}, {f32(BETA)}, v{TMP + 1}", f"v_mul_f32 v{TMP + 1}, {f32(BETA)}, v{TMP + 1}",
          f"v_mul_f32_e64 v{TMP + 2}, -v{s[0]}, v{TMP}", f"v_mul_f32_e64 v{TMP + 3}, -v{s[0]}, v{TMP}"] + stamp("stats")
    if OPT["pkn"] & 1:
        o += [f"v_pk_fma_f32 {vr(CACC + j, 2)}, {vr(CACC + j, 2)}, {vr(TMP, 2)}, {vr(TMP + 2, 2)}"
              for j in range(0, 48, 2)]
    for kk in range(6):
        for cg in (2 * kk, 2 * kk + 1):
            o += [f"v_fma_f32 v{cv(cg, r)}, v{cv(cg, r)}, v{TMP}, v{TMP + 2}" for r in range(4) if not OPT["pkn"] & 1]
        if kk == 0:
            o += stamp("l2")
        if kk == 1:
            o += ["s_waitcnt lgkmcnt(0)"] + stamp("sig")
        c4 = [f"v_cvt_pk_bf16_f32 v{BOP + 2 * cg + i}, v{cv(cg, 2 * i)}, v{cv(cg, 2 * i + 1)}"
              for cg in (2 * kk, 2 * kk + 1) for i in range(2)]
        m = [mf(ACC1, W1F + 4 * (kk - 1), BOP + 4 * (kk - 1), BIAS if kk == 1 else ACC1)] if kk else []
        o += c4[:2] + m + c4[2:] if OPT["pkn"] & 1 else m + c4
    rd = [f"ds_read_b128 {vr(ACC2 + 4 * i, 4)}, v{AGAM} offset:{B2OFF + 64 * (i // 2) + 16 * (i % 2)}" for i in range(12)]
    return o + rd[:2] + [mf(ACC1, W1F + 20, BOP + 20, ACC1)] + rd[2:] + stamp("ln")


def conv_l():
    o = stamp("x", True)
    q = LdsQueue()
    mark = {}

    def reads(a, u):
        b = BB + 52 * (a % 2)
        if u < 5:
            r = [f"ds_read_b128 {vr(b + 8 * u + 4 * h, 4)}, v{CP + h} offset:{7680 * u + 64 * a}" for h in range(2)]
        elif u == 5:
            r = [f"ds_read_b128 {vr(b + 40 + 4 * j, 4)}, v{CP + 2} offset:{15360 * j + 64 * a}" for j in range(2)]
        else:
            r = [f"ds_read_b128 {vr(b + 48, 4)}, v{CP + 3} offset:{64 * a}"]
        q.issue(r)
        mark[a, u] = q.n
        return r

    def pack(a):
        return [f"v_cvt_pk_bf16_f32 v{af(a, 0) + 2 * t + i}, v{cacc(a, t) + 2 * i}, v{cacc(a, t) + 2 * i + 1}"
                for t in range(3) for i in range(2)]

    def sm(a, t, f, b):
        return f"v_smfmac_f32_16x16x64_bf16 {vr(cacc(a, t), 4)}, {vr(af(a, f), 4)}, {vr(b, 8)}, v{IDX}"

    def put(a, t):
        return [f"ds_write_b64 v{EXW}, {vr(af(a, 0) + 2 * t, 2)} offset:{6144 * t + 2048 * a}"]
    xres = [[f"ds_read_b128 {vr(XRES + 8 * a, 4)}, v{XRA} offset:{64 * a}"] for a in range(3)]
    xres += [[f"v_xor_b32 v{XRA}, 32, v{XRA}"] * (a == 0) + [f"ds_read_b128 {vr(XRES + 8 * a + 4, 4)}, v{XRA} offset:{64 * a}"]
             for a in range(3)]
    for u in range(7):
        o += reads(0, u)
    todo = [(a, u) for a in (1, 2) for u in range(7)]
    for a in range(3):
        b = BB + 52 * (a % 2)
        pk = pack(a - 1) if a else []
        for u in range(7):
            o += q.wait(mark[a, u])
            if u == 0:
                o += stamp(f"c{a}")
            if a == 0 and u == OPT["sig3"]:
                o += ["s_waitcnt vmcnt(15)"] + q.issue(signal(3, FV))
            if a == 1 and u == 0:
                o += q.issue(flag_read(FV, False))
            while todo and todo[0][0] <= a + 1 and q.n + 2 - q.done <= 15:
                o += reads(*todo.pop(0))
            if a == 2:
                if u == 0:
                    o += recheck("L_pollTop", 6, FV, False)
                if u >= 1:
                    o += q.issue(xres[u - 1] + put((u - 1) // 3, (u - 1) % 3))
            if u < 5:
                ms = [sm(a, t, u - t, b + 8 * u) for t in range(3) if 0 <= u - t <= 2]
            else:
                ms = [sm(a, t, 3 + t % 2, b + 40 + 4 * (t // 2)) for t in ((0, 1) if u == 5 else (2,))]
            for m in ms:
                o += [m]
                if u >= 1:
                    o += pk[:1]
                    pk = pk[1:]
    o += stamp("conv", True)
    pk = pack(2)
    for t in range(3):
        o += pk[2 * t:2 * t + 2] + put(2, t)
    o += ["s_waitcnt vmcnt(0)"] + signal(5, TMP + 2) + stamp("sig")
    o += [f"v_mov_b32 v{NEG + i}, 0xbf80bf80" for i in range(4)]
    o += [f"v_mov_b32 v{TMP + 1}, {f32(1e-5)}", f"v_mov_b32 v{PV}, 6"]
    o += ["s_setprio 3"] + poll("L_pollEx", None, 5, TMP + 4)
    o += stamp("stats", True) + [f"s_cmp_eq_u32 s{KQ}, 3", "s_cbranch_scc1 L_helper"]
    return o


def layernorm_l(st):
    q = [TMP + 6, TMP + 7]
    d = D(st, 5)
    acc = ACC1 + 16
    H = st.name == "H"
    o = ["L_helper:"] * H + [f"ds_read_b64 {vr(BOP + 2 * cg, 2)}, v{EXR} offset:{512 * cg}" for cg in range(12)]


    def wide(kk):
        dst = CACC + 16 * (kk // 2)
        return f"v_mfma_f32_32x32x16_bf16 {vr(dst, 16)}, {vr(DG + 4 * (kk % 2), 4)}, {vr(BOP + 4 * kk, 4)}, {vr(dst, 16) if kk % 2 else 0}"

    def total(kk):
        return f"v_mfma_f32_32x32x16_bf16 {vr(SUMD, 16)}, {vr(NEG, 4)}, {vr(BOP + 4 * kk, 4)}, {vr(SUMD, 16) if kk else 0}"
    sq = [f"v_mul_f32 v{q[j]}, v{CACC + j}, v{CACC + j}" for j in range(2)]
    sq += [f"v_fmac_f32 v{q[j % 2]}, v{CACC + j}, v{CACC + j}" for j in range(2, 48)]
    o += ["s_waitcnt lgkmcnt(10)", wide(0), "s_waitcnt lgkmcnt(8)", wide(1), "s_waitcnt lgkmcnt(4)"] + d[:4] + [wide(2)]
    o += d[4:8] + [wide(3), "s_waitcnt lgkmcnt(8)", f"ds_write_b8 v{FLW}, v{PV}"] + d[8:11] + [wide(4)] + stamp("l0")
    o += d[11:16] + [wide(5)]
    if OPT["pkq"]:
        o += [total(kk) for kk in range(6)]
        o += [f"v_pk_mul_f32 {vr(q[0], 2)}, {vr(CACC, 2)}, {vr(CACC, 2)}", f"v_pk_mul_f32 {vr(TMP + 4, 2)}, {vr(CACC + 2, 2)}, {vr(CACC + 2, 2)}"]
        o += [f"v_pk_fma_f32 {vr(r, 2)}, {vr(CACC + j, 2)}, {vr(CACC + j, 2)}, {vr(r, 2)}"
              for j in range(4, 48, 2) for r in [q[0] if j % 4 == 0 else TMP + 4]]
        o += [f"v_pk_add_f32 {vr(q[0], 2)}, {vr(q[0], 2)}, {vr(TMP + 4, 2)}"]
    else:
        for kk in range(6):
            o += sq[6 * kk:6 * kk + 6] + [total(kk)]
        o += sq[36:]
    o += stamp("l1")
    o += [f"v_add_f32 v{q[0]}, v{q[0]}, v{q[1]}", f"v_mov_b32 v{q[1]}, v{q[0]}",
          f"v_mul_f32 v{SUMD}, {f32(1 / 96)}, v{SUMD}",
          f"v_permlane32_swap_b32 v{q[0]}, v{q[1]}", f"v_add_f32 v{q[0]}, v{q[0]}, v{q[1]}",
          f"v_fmamk_f32 v{q[0]}, v{q[0]}, {f32(1 / 96)}, v{TMP + 1}", f"v_fma_f32 v{q[0]}, -v{SUMD}, v{SUMD}, v{q[0]}",
          f"v_max_f32 v{q[0]}, v{TMP + 1}, v{q[0]}", f"v_rsq_f32 v{TMP + 1}, v{q[0]}",
          "s_waitcnt lgkmcnt(0)", f"v_mul_f32 v{TMP}, {f32(BETA)}, v{TMP + 1}", f"v_mul_f32 v{TMP + 1}, {f32(BETA)}, v{TMP + 1}",
          f"v_mul_f32 v{TMP + 2}, v{SUMD}, v{TMP}", f"v_mul_f32 v{TMP + 3}, v{SUMD}, v{TMP}"] + stamp("l2")
    if OPT["pkn"] & 2:
        o += [f"v_pk_fma_f32 {vr(CACC + j, 2)}, {vr(CACC + j, 2)}, {vr(TMP, 2)}, {vr(TMP + 2, 2)}"
              for j in range(0, 48, 2)]
    for kk in range(6):
        o += [f"v_fma_f32 v{CACC + 8 * kk + j}, v{CACC + 8 * kk + j}, v{TMP}, v{TMP + 2}" for j in range(8) if not OPT["pkn"] & 2]
        c4 = [f"v_cvt_pk_bf16_f32 v{BOP + 4 * kk + i}, v{CACC + 8 * kk + 2 * i}, v{CACC + 8 * kk + 2 * i + 1}" for i in range(4)]
        m = [mf(acc, W1F + 4 * (kk - 1), BOP + 4 * (kk - 1), BIAS if kk == 1 else acc)] if kk else []
        o += c4[:2] + m + c4[2:] if OPT["pkn"] & 2 else m + c4
    o += [f"v_mov_b32 v{XV}, 1"]
    if H:
        return o + [f"v_add_u32 v{XRA}, {SLOT}, v{WV2}", mf(acc, W1F + 20, BOP + 20, acc)] + stamp("ln")
    rd = [f"ds_read_b128 {vr(ACC2 + 4 * i, 4)}, v{AGAM} offset:{B2OFF + 64 * (i // 2) + 16 * (i % 2)}" for i in range(12)]
    o += rd[:1] + [mf(acc, W1F + 20, BOP + 20, acc)] + rd[1:]
    o += stamp("ln")
    return o


def mf(d, a, b, c):
    return f"v_mfma_f32_32x32x16_bf16 {vr(d, 16)}, {vr(a, 4)}, {vr(b, 4)}, {vr(c, 16)}"


def hreg(h, i):
    return ACC1 + 16 * ((h // 2) % 2) + 8 * (h % 2) + i


def treg(h, i):
    return TR + 8 * (h % 2) + i


def greg(h):
    return GR + 4 * (h % 2)


class Stream:
    def __init__(self, name, lo, cmap, acc=lambda h: ACC2, fresh=()):
        self.name, self.lo, self.cmap, self.acc, self.fresh = name, lo, cmap, acc, fresh

    def ok(self, h):
        return self.lo <= h < 24

    def base(self, b):
        return 0 if self.fresh else 2 * (max(b - 3, 0) // 8)

    def gemm2_plan(self, b):
        if b >= 23:
            return [(b - 2, TAILFRAG[b])]
        return [] if b % 2 else [(h, f) for h, f in ((b - 3, W2F), (b - 2, W2F + 12)) if self.ok(h)]


TAILFRAG = {23: W1F, 24: W2F + 12, 25: W1F + 12}
STE = Stream("E", 0, lambda j: j)
STL = Stream("L", 6, lambda j: j)
STH = Stream("H", 6, lambda j: j % 3, lambda h: XRES if 12 <= h < 18 else ACC2, fresh=(6, 12, 18))


def gemm2(st, h, frag):
    a = st.acc(h)
    return [f"v_mfma_f32_32x32x16_bf16 {vr(a + 16 * m, 16)}, {vr(frag + 4 * m, 4)}, {vr(greg(h), 4)}, "
            f"{0 if h in st.fresh else vr(a + 16 * m, 16)}" for m in range(3)]


def S(st, b, fill=()):
    ok = st.ok
    T = [f"v_rcp_f32 v{treg(b - 1, i)}, v{treg(b - 1, i)}" for i in range(8) if ok(b - 1)]
    T += [f"v_exp_f32 v{treg(b, i)}, v{treg(b, i)}" for i in range(8) if ok(b)]
    T += list(fill)
    o = [f"v_cvt_pk_bf16_f32 v{greg(b - 2) + i}, v{hreg(b - 2, 2 * i)}, v{hreg(b - 2, 2 * i + 1)}"
         for i in range(4) if ok(b - 2)]
    ms = []
    if b % 2 and b <= 21:
        j = (b + 1) // 2
        d = ACC1 + 16 * (j % 2)
        ms = [mf(d, W1F + 4 * k, BOP + 4 * k, BIAS if k == 0 else d) for k in range(6)]
    plan = st.gemm2_plan(b)
    if plan and plan[0][0] == b - 2:
        o += T[:2]
        T = T[2:]
    ms += sum((gemm2(st, h, f) for h, f in plan), [])
    n = 6 if b == 25 else 3
    for m in ms:
        o += [m] + T[:n]
        T = T[n:]
    return o + T


def F(st, b, pk=False):
    ok = st.ok
    if pk:
        prs = range(0, 8, 2)
        o = [f"v_pk_add_f32 {vr(treg(b, i), 2)}, {vr(treg(b, i), 2)}, s[{KONE}:{KONE + 1}]" for i in prs if ok(b)]
        o += [f"v_pk_mul_f32 {vr(hreg(b - 1, i), 2)}, {vr(hreg(b - 1, i), 2)}, {vr(treg(b - 1, i), 2)}" for i in prs if ok(b - 1)]
        if ok(b + 1):
            o += [f"v_pk_fma_f32 {vr(treg(b + 1, i), 2)}, {vr(hreg(b + 1, i), 2)}, {vr(hreg(b + 1, i), 2)}, s[{KC}:{KC + 1}]" for i in prs]
            o += [f"v_pk_mul_f32 {vr(treg(b + 1, i), 2)}, {vr(hreg(b + 1, i), 2)}, {vr(treg(b + 1, i), 2)}" for i in prs]
        return o
    o = [f"v_add_f32 v{treg(b, i)}, 1.0, v{treg(b, i)}" for i in range(8) if ok(b)]
    o += [f"v_mul_f32 v{hreg(b - 1, i)}, v{hreg(b - 1, i)}, v{treg(b - 1, i)}" for i in range(8) if ok(b - 1)]
    if ok(b + 1):
        o += [f"v_fmaak_f32 v{treg(b + 1, i)}, v{hreg(b + 1, i)}, v{hreg(b + 1, i)}, {f32(CGELU)}" for i in range(8)]
        o += [f"v_mul_f32 v{treg(b + 1, i)}, v{hreg(b + 1, i)}, v{treg(b + 1, i)}" for i in range(8)]
    return o


def w2reads(st, h, frag, base):
    h = 2 * st.cmap(h // 2) + h % 2
    off = (h // 4 - base) * PAIR + 12288 + 3072 * (h % 4)
    return [f"ds_read_b64_tr_b16 {vr(frag + 4 * m + 2 * hf, 2)}, v{AW2} offset:{off + 1536 * hf + 64 * m}"
            for m in range(3) for hf in range(2)]


def D(st, b):
    base = st.base(b)
    if b % 2 and b <= 21:
        ch = st.cmap((b + 1) // 2)
        off = (ch // 2 - base) * PAIR + 512 * (ch % 2)
        o = [f"ds_read_b128 {vr(BIAS + 4 * k, 4)}, v{ABI} offset:{128 * ch + 32 * k}" for k in range(4)]
        return o + [f"ds_read_b64_tr_b16 {vr(W1F + 2 * k, 2)}, v{AW1} offset:{off + 1024 * k}" for k in range(12)]
    if b >= 23:
        return w2reads(st, b - 2, TAILFRAG[b], base) if b <= 25 else []
    return sum((w2reads(st, h, f, base) for h, f in ((b - 3, W2F), (b - 2, W2F + 12)) if st.ok(h)), [])


def block(st, mode, b, pre=(), post=(), fast=()):
    w = ["s_waitcnt lgkmcnt(0)"]
    d = list(pre) + D(st, b + 1) + list(post)
    f = F(st, b, mode in ("solo", "Bpk")) + list(fast)
    if mode == "solo":
        return w + S(st, b) + d + f
    if mode == "A":
        k = 1 if pre else 0
        return ["s_setprio 2"] + w + S(st, b) + d[:k] + ["s_setprio 0"] + d[k:] + f
    if mode == "Ahi":
        return ["s_setprio 2"] + w + S(st, b) + d + f
    return w + d + ["s_setprio 1"] + S(st, b) + ["s_setprio 3"] + f


XF = [BIAS, BIAS + 8, BOP, BOP + 8, BOP + 16, TMP + 8]
GAM = [ACC1, ACC1 + 8, TMP, W2F, TR, TMP + 16]


def gam_reads(cis):
    return [f"ds_read_b128 {vr(GAM[ci] + 4 * t, 4)}, v{AGAM} offset:{GAMOFF + 64 * ci + 16 * t}" for ci in cis for t in range(2)]


def flush(acc, lo=0, hi=12):
    return ([f"ds_write_b128 v{OW}, {vr(acc + 4 * i, 4)} offset:{1024 * i}" for i in range(lo, hi)]
            + [f"ds_write_b8 v{FLW}, v{XV} offset:4"] * (hi == 12))


def mlp(st):
    g = st.name
    E, H = g == "E", g == "H"

    def mode(b):
        if not E:
            return "Ahi" if H and OPT["hhi"] and b in (9, 15) else "A"
        return "Bpk" if b < OPT["pke"] else "solo" if b >= OPT["pk"] else "B"
    first = {3: 0, 4: 4, 5: 8} if E else {3: 7, 4: 10, 5: 13}
    piece = {b + k: k for b in first.values() for k in range(3)}
    raise_at = {b + 4: True for b in first.values()}
    if H:
        need = {7: (True, 6), 13: (True, 7), 14: (False, 8), 18: (True, 8), 19: (False, 9)}
    else:
        need = {4 * p - 2: (False, p + 4) for p in (3, 4, 5)}
        need.update({4 * p + 1: (True, p + 4) for p in (3, 4, 5)})
        need.update({0: (False, 6), 1: (True, 5), 4: (True, 6), 22: (False, 10)} if E else {7: (True, 6)})
    if E:
        raise_at[18] = False
    hi = [f"v_and_b32 v{XF[ci] + 2 * j + 1}, 0xffff0000, v{XRES + 4 * ci + j}" for ci in range(6) for j in range(4)]
    o = [f"s_setprio {3 if E else 0}"] + [f"v_mov_b32 v{PV}, 7"]
    if st.lo in need:
        o += flag_read(FV, need[st.lo][0])
    if E:
        o += [f"s_mov_b32 s{KONE + i}, 1.0" for i in range(2)] + [f"s_mov_b32 s{KC + i}, {f32(CGELU)}" for i in range(2)]
    o += F(st, st.lo - 1, E and OPT["pke"] > 0)
    for b in range(st.lo, 25):
        pre = recheck(f"L_need{g}{b}", need[b][1], FV, need[b][0]) if b in need else []
        post, fast = [], []
        if g == "L" and b == OPT["hand"]:
            post += [f"s_cmp_eq_u32 s{KQ}, 0", "s_cbranch_scc1 L_nohand"]
            post += [f"ds_write_b128 v{BOPW}, {vr(BOP + 4 * kk, 4)} offset:{1024 * kk}" for kk in range(6)]
            post += [f"ds_write_b8 v{FLW}, v{XV} offset:4", "L_nohand:"]
        if H and b == 8:
            post += [f"ds_read_b32 v{FV}, v{FLR} offset:8"]
        if H and b == 9:
            chk = [f"v_readfirstlane_b32 s{SA}, v{FV}", f"s_andn2_b32 s{SA}, 0x010100, s{SA}"]
            pre = chk + ["s_cbranch_scc0 L_hand_ok", "L_hand:", f"ds_read_b32 v{FV}, v{FLR} offset:8", "s_waitcnt lgkmcnt(0)"]
            pre += chk + ["s_cbranch_scc1 L_hand", "L_hand_ok:"]
        if H and b in (9, 15):
            post += [f"ds_read_b128 {vr(BOP + 4 * kk, 4)}, v{XRA} offset:{1024 * (b - 9 + kk)}" for kk in range(6)]
        if b in raise_at:
            post += [f"s_waitcnt vmcnt({int(b - 1 in piece)})"] * raise_at[b] + [f"ds_write_b8 v{FLW}, v{PV}"]
            fast += [f"v_add_u32 v{PV}, 1, v{PV}"]
        if b in piece:
            post += wpiece("E" if E else "L", piece[b])
        if H and b in (13, 19):
            fast += [f"v_add_u32 v{OW}, {PART[(b - 13) // 6]}, v{WV2}"]
        if H and b >= 14 and (b - 14) % 6 < 3:
            k = (b - 14) % 6
            post += flush(st.acc(b - k - 3), 4 * k, 4 * k + 4)
            fast += [f"v_add_u32 v{XV}, 1, v{XV}"] * (k == 2)
        if b + 1 in need:
            post += flag_read(FV, need[b + 1][0])
        if b in (9, 17) and not H:
            fast += [f"v_add_u32 v{AW1}, {2 * PAIR}, v{AW1}", f"v_add_u32 v{AW2}, {2 * PAIR}, v{AW2}"]
        if b == 23 and not H:
            post += gam_reads([2, 3, 5])
            fast += hi[:16]
        if b == 24 and not H:
            post += gam_reads([0, 1, 4]) + [f"ds_read_u8 v{FV}, v{FLR} offset:11"] * (g == "L")
            fast += hi[16:] + [f"v_xor_b32 v{XRA}, 32, v{OW}"]
        if b == 22:
            o += stamp("loop")
        if E and b == OPT["pk"]:
            o += [f"s_setprio {OPT['soloprio']}"]
        o += block(st, mode(b), b, pre, post, fast)
        if b == st.lo + 1:
            o += stamp("head")
    return o


def epilogue(st):
    grp = st.name
    lo = [f"v_lshlrev_b32 v{XF[ci] + 2 * j}, 16, v{XRES + 4 * ci + j}" for ci in range(6) for j in range(4)]
    o = [f"s_setprio {OPT['eprio']}"] * (grp != "E") + ["s_waitcnt lgkmcnt(0)"] + S(st, 25, lo if grp != "H" else [f"v_add_u32 v{OW}, {PART[2]}, v{WV2}"])
    o += stamp("mlp")
    if grp == "H":
        o += flush(ACC2) + stamp("poll") + stamp("lds")
    else:
        def fma(ci, src):
            if grp == "E" and OPT["pk"] <= 25:
                return [f"v_pk_fma_f32 {vr(XF[ci] + j, 2)}, {vr(src(j), 2)}, {vr(GAM[ci] + j, 2)}, {vr(XF[ci] + j, 2)}"
                        for j in range(0, 8, 2)]
            return [f"v_fmac_f32 v{XF[ci] + j}, v{src(j)}, v{GAM[ci] + j}" for j in range(8)]
        o += [f"v_add_u32 v{WV2}, s{STG}, v{WV2}"]
        if grp == "L":
            o += sum((fma(ci, lambda j: ACC2 + 8 * ci + j) for ci in range(6)), [])
            chk = [f"v_readfirstlane_b32 s{SA}, v{FV}", f"s_cmp_gt_u32 s{SA}, s{KQ}"]
            o += chk + ["s_cbranch_scc1 L_part_ok", "L_part:", f"ds_read_u8 v{FV}, v{FLR} offset:11", "s_waitcnt lgkmcnt(0)"]
            o += chk + ["s_cbranch_scc0 L_part", "L_part_ok:"] + stamp("poll", True)
            o += [f"ds_read_b128 {vr(ACC2 + 4 * i, 4)}, v{WV2} offset:{1024 * i}" for i in range(12)]
        else:
            o += stamp("poll", True)
        for ci in range(6):
            o += [f"s_waitcnt lgkmcnt({10 - ci})"] * (grp == "L")
            o += fma(ci, lambda j: ACC2 + 8 * ci + j)
            o += [f"v_cvt_pk_bf16_f32 v{XRES + 4 * ci + j}, v{XF[ci] + 2 * j}, v{XF[ci] + 2 * j + 1}" for j in range(4)]
            o += [f"ds_write_b128 v{XRA if ci % 2 else OW}, {vr(XRES + 4 * ci, 4)} offset:{64 * (ci // 2)}"]
        o += [f"s_add_u32 s{SA}, s{OBASE}, {ROWB}"]
        o += stamp("lds", True)
        for k in range(6):
            o += [f"ds_read_b128 {vr(ACC1 + 4 * k, 4)}, v{WV2} offset:{1024 * k}"]
        for k in range(6):
            o += [f"s_waitcnt lgkmcnt({5 - k})",
                  f"buffer_store_dwordx4 {vr(ACC1 + 4 * k, 4)}, v{GO + k % 3}, s[{SO}:{SO + 3}], "
                  f"s{OBASE if k < 3 else SA} offen {OPT['snt']}"]
    if OPT["stamps"]:
        o += stamp("issued_st") + ["s_waitcnt vmcnt(0)"] + stamp("end")
        o += ["s_memrealtime s[96:97]", "s_getreg_b32 s98, hwreg(HW_REG_HW_ID)", "s_waitcnt lgkmcnt(0)",
              f"s_lshl_b32 s{SA}, s2, 3", f"s_add_u32 s{SA}, s{SA}, s{WAVE}", f"s_lshl_b32 s{SA}, s{SA}, 6",
              f"v_mov_b32 v1, s{SA}"]
        n = nstamp[0]
        for i in range(n):
            o += [f"v_mov_b32 v{16 + i}, s{STAMP + 2 * i}"]
        o += [f"v_mov_b32 v{16 + i}, 0" for i in range(n, 13)]
        o += ["v_mov_b32 v29, s100", "v_mov_b32 v30, s96", "v_mov_b32 v31, s98"]
        o += [f"global_store_dwordx4 v1, {vr(16 + 4 * i, 4)}, s[20:21] offset:{16 * i}" for i in range(4)]
    return o


def main():
    segs = {}
    segs["setup"] = setup()
    segs["pf"] = prefetch() if OPT["pf"] else []
    segs["issueE"] = issue_e() + addresses("E")
    segs["issueL"] = issue_l() + addresses("L")
    segs["fragsE"] = frags_e()
    segs["fragsL"] = frags_l()
    segs["preE"] = pre_e()
    segs["preL"] = pre_l()
    segs["convE"] = conv_e()
    segs["convL"] = conv_l()
    segs["lnE"] = layernorm_e()
    segs["lnL"] = layernorm_l(STL)
    segs["startH"] = layernorm_l(STH)
    for st in (STE, STL, STH):
        segs["main" + st.name] = mlp(st)
        segs["epi" + st.name] = epilogue(st) + ["s_endpgm"] * (st.name != "H")
    traces = {
        "E": ["setup", "issueE", "fragsE", "preE", "convE", "lnE", "mainE", "epiE"],
        "L": ["setup", "pf", "issueL", "fragsL", "preL", "convL", "lnL", "mainL", "epiL"],
        "H": ["setup", "pf", "issueL", "fragsL", "preL", "convL", "startH", "mainH", "epiH"]}
    fix(segs, traces, verbose=bool(OPT.get("v")), lax=OPT["stamps"] and OPT["set"] == "cv")
    ref = open(f"cdna_kernels/{KN}.s.ref").read().split("\n")
    head = [l for l in ref if l.startswith(";") and "@launch" not in l]
    segs["entry"] = ["s_branch L_start"] + segs["pf"] + ["L_start:"]
    order = ["entry", "setup", "issueE", "fragsE", "preE", "convE", "lnE", "mainE", "epiE",
             "issueL", "fragsL", "preL", "convL", "lnL", "mainL", "epiL", "startH", "mainH", "epiH"]
    out = head + [f"; @launch grid=(224,1,1) block=(512,1,1) lds={LDS_BYTES}",
                  '.amdgcn_target "amdgcn-amd-amdhsa--gfx950"', ".text", f".globl {KN}_kernel", ".p2align 8",
                  f".type {KN}_kernel,@function", f"{KN}_kernel:"]
    for s in order:
        out += [f"; ---- {s}"] + [l if l.endswith(":") or l.startswith(".") else "    " + l.rstrip() for l in segs[s]]
    out += ["L_end:", "    s_endpgm", "L_codeend:",
            '.section .rodata,"a"', ".p2align 6", f".amdhsa_kernel {KN}_kernel",
            "  .amdhsa_next_free_vgpr 256", "  .amdhsa_next_free_sgpr 102", "  .amdhsa_accum_offset 256",
            "  .amdhsa_group_segment_fixed_size 0", "  .amdhsa_kernarg_size 80", "  .amdhsa_user_sgpr_count 2",
            "  .amdhsa_user_sgpr_kernarg_segment_ptr 1", "  .amdhsa_system_sgpr_workgroup_id_x 1",
            ".end_amdhsa_kernel"]
    open(sys.argv[1], "w").write("\n".join(out) + "\n")
    if OPT["stamps"]:
        open(sys.argv[1] + ".stamps", "w").write(" ".join(STAMPS))


if __name__ == "__main__":
    main()
```
